```python
import torch

def _softmax(x, axis=-1):
    return torch.softmax(x, dim=axis)
def _gelu(x):
    return torch.nn.functional.gelu(x, approximate="tanh")
def _silu(x):
    return torch.nn.functional.silu(x)
def _sigmoid(x):
    return torch.sigmoid(x)
def _layernorm(x, axis=-1, eps=1e-5):
    m = x.mean(dim=axis, keepdim=True)
    v = x.var(dim=axis, keepdim=True, unbiased=False)
    return (x - m) / torch.sqrt(v + eps)
def _scatter_add(tgt, idx, src, axis=0):
    return tgt.clone().index_add_(axis, idx, src)
def _segment_sum(src, seg, n):
    out = torch.zeros((n,) + src.shape[1:], dtype=src.dtype)
    return out.index_add_(0, seg, src)
def _pad(x, pw):
    flat = tuple(v for pair in reversed(pw) for v in pair)
    return torch.nn.functional.pad(x, flat)

kernel_name = 'concat_heads__softmax_full_mha__spectral_gfnet__prompt'

def setup_inputs():

    _w = (lambda a: (lambda t: t.to(torch.bfloat16) if t.is_floating_point() else t)(torch.as_tensor(a)))
    def _A_setup():
        B, S, D = 1, 2048, 448
        return {
            "x": _w((lambda *s: torch.randn(*s, dtype=torch.bfloat16) * 0.2)(B, S, D)),
            "wqkv": _w((lambda *s: torch.randn(*s, dtype=torch.bfloat16) * 0.2)(D, 3 * D)),
            "wo": _w((lambda *s: torch.randn(*s, dtype=torch.bfloat16) * 0.05)(D, D)),
        }
    _A_in = _A_setup()

    def _B_setup():
        B, S, D = 1, 2048, 448
        Df = D // 2 + 1
        return {
            "x": _w((lambda *s: torch.randn(*s, dtype=torch.bfloat16) * 0.05)(B, S, D)),
            "w_r": _w((lambda *s: torch.randn(*s, dtype=torch.bfloat16) * 6.4)(S, Df) * 0.02),
            "w_i": _w((lambda *s: torch.randn(*s, dtype=torch.bfloat16) * 6.4)(S, Df) * 0.02),
        }
    _B_in = _B_setup()

    return {
        "A_x": _A_in["x"],
        "A_wqkv": _A_in["wqkv"],
        "A_wo": _A_in["wo"],
        "B_x": _B_in["x"],
        "B_w_r": _B_in["w_r"],
        "B_w_i": _B_in["w_i"],
    }

def reference(A_x, A_wqkv, A_wo, B_x, B_w_r, B_w_i):
    def _A_ref(x, wqkv, wo):
        B, S, D = x.shape
        H = 16; Dh = D // H
        qkv = (lambda x, *d: x.permute(*d))((x @ wqkv).reshape(B, S, 3, H, Dh), 2, 0, 3, 1, 4)
        q, k, v = qkv[0], qkv[1], qkv[2]
        scale = Dh ** -0.5
        scores = torch.einsum("bhqd,bhkd->bhqk", q, k) * scale
        p = _softmax(scores, axis=-1)
        o = torch.einsum("bhqk,bhkd->bhqd", p, v)
        return (lambda x, *d: x.permute(*d))(o, 0, 2, 1, 3).reshape(B, S, D) @ wo

    def _B_ref(x, w_r, w_i):
        B, S, D = x.shape
        X = (lambda x, axes=(-2,-1): torch.fft.rfft2(x.float(), dim=axes))(x, axes=(-2, -1))
        W = w_r + 1j * w_i
        X = X * W
        y = (lambda x, s, axes=(-2,-1): torch.fft.irfft2(x, s=s, dim=axes).to(torch.bfloat16))(X, (S, D), axes=(-2, -1))
        return y

    a = _A_ref(A_x, A_wqkv, A_wo)
    b = _B_ref(B_x, B_w_r, B_w_i)
    return torch.concatenate([a, b], axis=-1)
```

```python
import re

class Asm:
    def __init__(self):
        self.L = []
    def __call__(self, s):
        for ln in s.split("\n"):
            ln = ln.strip()
            if ln:
                self.L.append("    " + ln)
    def label(self, n):
        self.L.append(n + ":")
    def raw(self, s):
        self.L.append(s)
    def c(self, s):
        self.L.append("    ; " + s)
    def text(self):
        return "\n".join(self.L) + "\n"

def vr(a, n=1):
    return f"v{a}" if n == 1 else f"v[{a}:{a+n-1}]"
def sr(a, n=1):
    return f"s{a}" if n == 1 else f"s[{a}:{a+n-1}]"
def ar(a, n=1):
    return f"a{a}" if n == 1 else f"a[{a}:{a+n-1}]"

_reg = re.compile(r"^(-|\|)?([vas])(?:(\d+)|\[(\d+):(\d+)\])\|?$")
def regs(tok):
    tok = tok.strip()
    tok = tok.replace("abs(", "").replace(")", "")
    if tok.startswith("-"): tok = tok[1:]
    tok = tok.strip("|")
    if tok == "vcc": return {"vcc"}
    if tok == "exec": return {"exec"}
    if tok == "m0": return {"m0"}
    m = _reg.match(tok)
    if not m: return set()
    k = m.group(2)
    if m.group(3) is not None:
        return {k + m.group(3)}
    return {k + str(i) for i in range(int(m.group(4)), int(m.group(5)) + 1)}

TRANS = ("v_exp_", "v_log_", "v_rcp_", "v_rsq_", "v_sqrt_", "v_sin_", "v_cos_")

class I:
    def __init__(self, line):
        line = line.split(";")[0].strip()
        self.line = line
        p = line.split(None, 1)
        self.mn = p[0]
        rest = p[1] if len(p) > 1 else ""
        ops = []
        depth = 0; cur = ""
        for ch in rest:
            if ch == "[": depth += 1
            if ch == "]": depth -= 1
            if ch == "," and depth == 0:
                ops.append(cur); cur = ""
            else:
                cur += ch
        if cur.strip(): ops.append(cur)
        self.mods = ""
        if ops:
            last = ops[-1].strip().split()
            if last:
                ops[-1] = last[0]
                self.mods = " ".join(last[1:])
        self.ops = [o.strip() for o in ops]
        mn = self.mn
        self.kind = "other"
        self.w = set(); self.r = set()
        self.states = 1
        R = [regs(o) for o in self.ops]
        if mn == "s_nop":
            self.kind = "nop"; self.states = int(self.ops[0], 0) + 1
        elif mn.startswith("v_mfma"):
            self.kind = "mfma"
            self.w = R[0]; self.A = R[1]; self.B = R[2]; self.C = R[3]
            self.r = R[1] | R[2] | R[3]
            self.passes = 8 if "32x32x16" in mn else (4 if "16x16x32" in mn else 16)
        elif mn.startswith("v_"):
            self.kind = "valu"
            self.trans = mn.startswith(TRANS)
            self.dpp = "_dpp" in mn or "row_" in self.mods or "quad_perm" in self.mods
            self.perm = mn.startswith("v_permlane")
            if mn.startswith("v_cmp"):
                self.w = R[0]; self.r = set().union(*R[1:])
            elif self.perm:
                self.w = R[0] | R[1]; self.r = R[0] | R[1]
            elif mn.startswith(("v_readlane", "v_readfirstlane")):
                self.w = R[0]; self.r = set().union(*R[1:])
            else:
                self.w = R[0]; self.r = set().union(*R[1:]) if len(R) > 1 else set()
                if mn.startswith(("v_fmac", "v_mac", "v_pk_fmac", "v_writelane")) or self.dpp:
                    self.r |= R[0]
                if mn.startswith(("v_add_co", "v_sub_co", "v_addc_co", "v_subb_co")):
                    self.w |= R[1]
                if mn == "v_cndmask_b32" and len(self.ops) == 3:
                    self.r |= {"vcc"}
        elif mn.startswith(("buffer_", "global_")):
            self.kind = "vmem"
            self.lds = "lds" in self.mods.split() or "_lds_" in mn
            if mn.startswith(("buffer_inv", "buffer_wbl2")):
                pass
            elif "load" in mn and not self.lds:
                self.w = R[0]; self.r = set().union(*R[1:])
            elif "store" in mn or "atomic" in mn:
                self.r = set().union(*R)
                self.data = R[0] if mn.startswith("buffer_") else R[1]
                self.wide = "x4" in mn or "x3" in mn
            else:
                self.r = set().union(*R)
        elif mn.startswith("ds_"):
            self.kind = "ds"
            if "read" in mn or "_rtn" in mn or "bpermute" in mn or "swizzle" in mn:
                self.w = R[0]; self.r = set().union(*R[1:])
            else:
                self.r = set().union(*R)
        elif mn.startswith("s_"):
            self.kind = "salu"
            if mn.startswith(("s_cmp", "s_waitcnt", "s_barrier", "s_branch", "s_cbranch", "s_endpgm", "s_setprio", "s_bitcmp", "s_sleep")):
                self.r = set().union(*R) if R else set()
            else:
                self.w = R[0] if R else set()
                self.r = set().union(*R[1:]) if len(R) > 1 else set()
                if "saveexec" in mn:
                    self.w |= {"exec"}; self.r |= {"exec"}

def check(lines, name=""):
    ins = []
    for ln in lines:
        s = ln.split(";")[0].strip()
        if not s or s.endswith(":") or s.startswith("."):
            continue
        ins.append(I(s))
    errs = []
    n = len(ins)
    isv = lambda x: x[0] in "va" and x[1:].isdigit()
    iss = lambda x: (x[0] == "s" and x[1:].isdigit()) or x == "vcc"
    for j in range(n):
        c = ins[j]
        dist = 0
        for i in range(j - 1, max(-1, j - 40), -1):
            p = ins[i]
            need = 0; why = ""
            def req(k, w):
                nonlocal need, why
                if k > need: need, why = k, w
            if p.kind == "valu":
                pv = {x for x in p.w if isv(x)}
                ps = {x for x in p.w if iss(x)}
                if c.kind == "mfma" and pv & c.r: req(2, "VALU->MFMA src")
                if c.kind == "valu":
                    if p.trans and not c.trans and pv & c.r: req(1, "trans->VALU")
                    if (c.perm or c.dpp) and pv & c.r: req(2, "VALU->permlane/DPP")
                    if c.mn.startswith(("v_readlane", "v_readfirstlane")) and pv & c.r: req(1, "VALU->readlane")
                    if ps & c.r:
                        req(2, "VALU sgpr->VALU const")
                        if c.mn.startswith(("v_readlane", "v_writelane")): req(4, "VALU sgpr->lane select")
                if c.kind == "vmem" and ps & c.r: req(5, "VALU sgpr->VMEM")
                if c.kind == "salu" and ps & c.r: req(1, "VALU sgpr->SALU (pad)")
            if p.kind == "mfma":
                P = p.passes
                t = {2: 5, 4: 8, 8: 12, 16: 20}[P]
                if c.kind == "mfma":
                    if p.w & (c.A | c.B): req(t, "MFMA D->MFMA A/B")
                    if p.w & c.C and p.w != c.C: req({2: 4, 4: 6, 8: 10, 16: 18}[P], "MFMA D->MFMA C overlap")
                    if p.w & c.w and p.w != c.w: req({2: 4, 4: 6, 8: 10, 16: 18}[P], "MFMA D->MFMA D overlap")
                elif c.kind in ("valu", "vmem", "ds"):
                    if p.w & (c.r | c.w): req(t, "MFMA D->VALU/VMEM/DS")
                    if c.kind == "valu" and p.C & c.w: req({2: 1, 4: 3, 8: 7, 16: 15}[P], "MFMA C read->VALU write")
            if p.kind == "vmem" and getattr(p, "wide", False):
                if c.kind == "valu" and p.data & c.w: req(2, "wide store data->VALU write")
                elif (c.kind in ("vmem", "ds")) and p.data & c.w: req(1, "wide store data->write")
            if p.kind == "salu" and "m0" in p.w and c.kind == "vmem" and getattr(c, "lds", False): req(1, "M0->LDS DMA")
            if need > dist:
                errs.append(f"{name}: need {need} states ({why}), have {dist}: [{p.line}] -> [{c.line}]")
            dist += p.states
            if dist >= 20: break
    return errs
```

```python
import numpy as np
S=2048; D=448; H=16; DH=28
QF=0x000000; KF=0x200000; VF=0x400000
NRM=0x600000
ZF=0x700000
WT=0x900000
OF=0xD00000
ZT=0xF00000
WS_USED=0x1100000
CQ = float(np.float32(DH**-0.5*np.log2(np.e)))

def f2u(x):
    return int(np.float32(x).view(np.uint32))
def bf16bits(x):
    u = f2u(x)
    return ((u + 0x7FFF + ((u >> 16) & 1)) >> 16) & 0xFFFF
def pi_slot(ks, hf, j):
    return 16*ks + 8*(j//4) + 4*hf + (j % 4)
```

```python
from asmlib import *
from common import *

def srd(a, s, lo, hi, size):
    a(f"s_mov_b32 s{s}, {lo}")
    a(f"s_and_b32 s{s+1}, {hi}, 0xffff")
    a(f"s_mov_b32 s{s+2}, {size}")
    a(f"s_mov_b32 s{s+3}, 0x20000")

STAGES1 = [4, 6, 6, 6, 6]

def gen_k1(a):
    X0 = 16; ACC = 128; WF = 192; P = 16
    a.label("k1_kernel")
    a("s_cmp_ge_u32 s2, 256")
    a("s_cbranch_scc1 k1_end")
    a("s_load_dwordx4 s[4:7], s[0:1], 0")
    a("s_load_dwordx2 s[8:9], s[0:1], 24")
    a("s_load_dwordx4 s[12:15], s[0:1], 32")
    a("s_load_dwordx2 s[10:11], s[0:1], 64")
    a("s_getpc_b64 s[42:43]")
    a.label("k1_pc")
    a("s_add_u32 s42, s42, TF@rel32@lo+4")
    a("s_addc_u32 s43, s43, TF@rel32@hi+12")
    a("s_and_b32 s40, s2, 7")
    a("s_lshr_b32 s41, s2, 3")
    a("s_lshr_b32 s16, s40, 1")
    a("s_and_b32 s17, s40, 1")
    a("s_lshl_b32 s17, s17, 3")
    a("s_and_b32 s44, s41, 7")
    a("s_or_b32 s17, s17, s44")
    a("s_lshr_b32 s18, s41, 3")
    a("v_lshrrev_b32 v4, 6, v0")
    a("v_and_b32 v1, 63, v0")
    a("v_readfirstlane_b32 s19, v4")
    a("v_and_b32 v2, 31, v1")
    a("v_lshrrev_b32 v3, 5, v1")
    a("s_cmp_eq_u32 s16, 3")
    a("s_mov_b32 s44, 896")
    a("s_cselect_b32 s44, 57344, s44")
    a("s_lshl_b32 s45, s17, 7")
    a("s_lshl_b32 s46, s19, 5")
    a("s_add_u32 s45, s45, s46")
    a("s_lshl_b32 s46, s17, 2")
    a("s_add_u32 s46, s46, s19")
    a("s_cmp_eq_u32 s16, 3")
    a("s_cselect_b32 s45, s46, s45")
    a("s_mul_i32 s45, s45, 896")
    a("v_mul_lo_u32 v4, v2, s44")
    a("v_lshlrev_b32 v5, 4, v3")
    a("v_add3_u32 v4, v4, v5, s45")
    a("s_mov_b32 s47, 2688")
    a("s_cselect_b32 s47, 896, s47")
    a("v_lshrrev_b32 v6, 4, v1")
    a("v_and_b32 v7, 15, v1")
    a("v_lshlrev_b32 v8, 2, v6")
    a("v_xor_b32 v7, v7, v8")
    a("v_mul_lo_u32 v5, v6, s47")
    a("v_lshl_add_u32 v5, v7, 4, v5")
    a("v_cmp_gt_u32 vcc, 14, v7")
    a("v_mov_b32 v8, 0x40000000")
    a("s_nop 0")
    a("v_cndmask_b32 v5, v8, v5, vcc")
    a("v_and_b32 v6, 15, v1")
    a("v_lshrrev_b32 v6, 2, v6")
    a("v_and_b32 v7, 3, v1")
    a("v_bfe_u32 v8, v1, 4, 1")
    a("v_lshlrev_b32 v8, 5, v8")
    a("v_lshl_add_u32 v7, v7, 3, v8")
    a("v_lshl_add_u32 v8, v3, 3, v6")
    a("v_lshlrev_b32 v8, 8, v8")
    a("v_lshlrev_b32 v6, 2, v6")
    for g in range(4):
        a(f"v_add_u32 v14, {56*g}, v7")
        a("v_lshrrev_b32 v15, 4, v14")
        a("v_xor_b32 v15, v15, v6")
        a("v_and_b32 v14, 15, v14")
        a("v_lshl_add_u32 v15, v15, 4, v14")
        a(f"v_add_u32 v{208+g}, v15, v8")
        a(f"v_add_u32 v{212+g}, 0x10000, v{208+g}")
    TRB = 208
    WTR = 216
    a("s_waitcnt lgkmcnt(0)")
    a("s_cmp_eq_u32 s16, 3")
    a("s_cselect_b32 s48, s8, s4")
    a("s_cselect_b32 s49, s9, s5")
    srd(a, 20, "s48", "s49", S*D*2)
    a("s_mul_i32 s50, s16, 896")
    a("s_mul_i32 s51, s18, 224")
    a("s_add_u32 s50, s50, s51")
    a("s_cmp_eq_u32 s16, 3")
    a("s_cselect_b32 s50, s51, s50")
    a("s_cselect_b32 s48, s42, s6")
    a("s_cselect_b32 s49, s43, s7")
    a(f"s_mov_b32 s52, {448*2688}")
    a(f"s_cselect_b32 s52, {448*896}, s52")
    a("s_add_u32 s48, s48, s50")
    a("s_addc_u32 s49, s49, 0")
    a("s_sub_u32 s52, s52, s50")
    srd(a, 24, "s48", "s49", "s52")
    srd(a, 28, "s10", "s11", WS_USED)
    srd(a, 32, "s12", "s13", S*225*2)
    srd(a, 36, "s14", "s15", S*225*2)
    a("s_lshl_b32 s53, s19, 2")
    a("s_mul_i32 s53, s53, s47")
    a("s_lshl_b32 s54, s47, 4")
    a("s_lshl_b32 s55, s19, 10")
    a("s_mov_b32 m0, s55")
    for ks in range(28):
        a(f"buffer_load_dwordx4 {vr(X0+4*ks,4)}, v4, s[20:23], 0 offen offset:{32*ks}")
        a("buffer_load_dwordx4 v5, s[24:27], s53 offen lds")
        if ks < 27:
            a("s_add_u32 s53, s53, s54")
            a("s_add_u32 m0, m0, 4096")
    for r in range(64):
        a(f"v_mov_b32 v{ACC+r}, 0")
    a("s_and_b32 s56, s2, 7")
    a("s_lshr_b32 s57, s2, 3")
    a("s_lshl_b32 s56, s56, 1")
    a("s_and_b32 s58, s57, 1")
    a("s_or_b32 s56, s56, s58")
    a("s_lshr_b32 s57, s57, 1")
    a("s_lshl_b32 s58, s56, 7")
    a("s_lshl_b32 s59, s57, 1")
    a("s_add_u32 s58, s58, s59")
    a("s_mul_i32 s60, s58, 450")
    a("s_add_u32 s61, s60, 14400")
    a("s_add_u32 s62, s60, 28800")
    a("s_add_u32 s63, s60, 43200")
    a("v_lshlrev_b32 v232, 1, v0")
    a("v_mov_b32 v233, 0x40000000")
    a("v_cmp_gt_u32 vcc, 225, v0")
    a("v_lshlrev_b32 v234, 14, v0")
    a("s_nop 0")
    a("v_cndmask_b32 v232, v233, v232, vcc")
    a("v_cndmask_b32 v234, v233, v234, vcc")
    a(f"v_mov_b32 v235, {f2u(2.0/(2048*448)):#x}")
    a(f"v_mov_b32 v236, {f2u(1.0/(2048*448)):#x}")
    a("v_cmp_eq_u32 vcc, 0, v0")
    a("s_nop 1")
    a("v_cndmask_b32 v235, v235, v236, vcc")
    a("v_cmp_eq_u32 vcc, 0xe0, v0")
    a("s_nop 1")
    a("v_cndmask_b32 v235, v235, v236, vcc")
    a("s_lshr_b32 s58, s56, 1")
    a("s_lshl_b32 s58, s58, 11")
    a("s_and_b32 s59, s56, 1")
    a("s_lshl_b32 s59, s59, 9")
    a("s_add_u32 s58, s58, s59")
    a("s_lshl_b32 s59, s57, 5")
    a("s_add_u32 s58, s58, s59")
    a(f"s_add_u32 s64, s58, {WT}")

    def trread(ks, g):
        base = TRB + g + (4 if ks >= 16 else 0)
        off = (ks % 16) * 4096
        a(f"ds_read_b64_tr_b16 {vr(WF+4*g,2)}, v{base} offset:{off}")
        a(f"ds_read_b64_tr_b16 {vr(WF+4*g+2,2)}, v{base} offset:{off+1024}")

    def mainloop(order):
        bounds = []
        acc = 0
        for n in STAGES1:
            acc += n; bounds.append(acc)
        assert acc == 28
        def stage_of(ks):
            for si, b in enumerate(bounds):
                if ks < b: return si
        extra = 0
        def stage_wait(si):
            nonlocal extra
            done = bounds[si]
            rem = (28 - done) * 2 + extra
            a(f"s_waitcnt vmcnt({rem})")
            a("s_barrier")
            if si == 0:
                so = ["s60", "s61", "s62", "s63"]
                for part in range(2):
                    for aa in range(2):
                        for b in range(4):
                            rr = WTR + (part*2+aa)*4 + b
                            a(f"buffer_load_ushort v{rr}, v232, s[{32+4*part}:{35+4*part}], {so[b]} offen offset:{450*aa}")
                extra = 16
        stage_wait(0)
        for g in range(4):
            trread(0, g)
        for ks in range(28):
            nxt = ks + 1
            if nxt < 28 and stage_of(nxt) != stage_of(ks):
                stage_wait(stage_of(nxt))
            for g in range(4):
                if nxt < 28:
                    a("s_waitcnt lgkmcnt(6)")
                else:
                    a(f"s_waitcnt lgkmcnt({2*(3-g)})")
                x = vr(X0+4*ks, 4); w = vr(WF+4*g, 4); d = vr(ACC+16*g, 16)
                if order == "WX":
                    a(f"v_mfma_f32_32x32x16_bf16 {d}, {w}, {x}, {d}")
                else:
                    a(f"v_mfma_f32_32x32x16_bf16 {d}, {x}, {w}, {d}")
                if nxt < 28:
                    trread(nxt, g)
        a("s_waitcnt vmcnt(0)")
        a("s_nop 7")
        a("s_nop 2")

    a("s_cmp_ge_u32 s16, 2")
    a("s_cbranch_scc1 k1_vb")
    mainloop("WX")
    a("s_mov_b32 s66, 0")
    a("s_mov_b32 s67, -1")
    a(f"s_mov_b32 s68, {f2u(CQ):#x}")
    a("s_cmp_eq_u32 s16, 0")
    a("s_cselect_b32 s68, s68, 1.0")
    a("s_mov_b32 s69, s68")
    a("s_lshl_b32 s70, s18, 8")
    a("s_add_u32 s70, s70, s46")
    a("s_lshl_b32 s70, s70, 11")
    a("s_lshl_b32 s71, s16, 21")
    a("s_add_u32 s70, s70, s71")
    a("v_lshlrev_b32 v4, 4, v1")
    a("v_mov_b32 v5, 1.0")
    for g in range(4):
        d = ACC + 16*g
        for r in range(0, 16, 2):
            a(f"v_pk_mul_f32 {vr(d+r,2)}, {vr(d+r,2)}, s[68:69]")
        for r in range(12, 16):
            a(f"v_cndmask_b32 v{d+r}, v{d+r}, 0, s[66:67]")
        n = 100 + 2*g
        a(f"v_pk_mul_f32 {vr(n,2)}, {vr(d,2)}, {vr(d,2)}")
        for r in range(2, 16, 2):
            a(f"v_pk_fma_f32 {vr(n,2)}, {vr(d+r,2)}, {vr(d+r,2)}, {vr(n,2)}")
        a(f"v_add_f32 v{n}, v{n}, v{n+1}")
        a("s_cmp_eq_u32 s16, 1")
        a(f"s_cselect_b64 s[72:73], s[66:67], 0")
        a(f"v_cndmask_b32 v{d+12}, v{d+12}, v5, s[72:73]")
        a("s_nop 0")
        for q in range(8):
            a(f"v_cvt_pk_bf16_f32 v{P+8*g+q}, v{d+2*q}, v{d+2*q+1}")
        a(f"buffer_store_dwordx4 {vr(P+8*g,4)}, v4, s[28:31], s70 offen")
        a(f"buffer_store_dwordx4 {vr(P+8*g+4,4)}, v4, s[28:31], s70 offen offset:1024")
        if g < 3:
            a("s_add_u32 s70, s70, 131072")
    for g in range(4):
        n = 100 + 2*g
        a(f"v_mov_b32 v{n+1}, v{n}")
    a("s_nop 1")
    for g in range(4):
        n = 100 + 2*g
        a(f"v_permlane32_swap_b32 v{n}, v{n+1}")
    for g in range(4):
        n = 100 + 2*g
        a(f"v_add_f32 v{n}, v{n}, v{n+1}")
    for sh in (1, 2, 4, 8):
        a("s_nop 1")
        for g in range(4):
            n = 100 + 2*g
            a(f"v_max_f32_dpp v{n}, v{n}, v{n} row_shr:{sh} row_mask:0xf bank_mask:0xf")
    a("s_nop 1")
    for g in range(4):
        n = 100 + 2*g
        a(f"v_readlane_b32 s{74+2*g}, v{n}, 15")
        a(f"v_readlane_b32 s{75+2*g}, v{n}, 31")
    a("s_nop 1")
    for g in range(4):
        a(f"s_max_u32 s{74+2*g}, s{74+2*g}, s{75+2*g}")
    for g in range(4):
        a(f"v_writelane_b32 v110, s{74+2*g}, {g}")
    a("s_lshl_b32 s70, s16, 4")
    a("s_lshl_b32 s71, s18, 2")
    a("s_add_u32 s70, s70, s71")
    a("s_lshl_b32 s70, s70, 8")
    a("s_lshl_b32 s71, s46, 2")
    a("s_add_u32 s70, s70, s71")
    a(f"s_add_u32 s70, s70, {NRM}")
    a("v_lshlrev_b32 v4, 8, v1")
    a("v_mov_b32 v5, 0x40000000")
    a("v_cmp_gt_u32 vcc, 4, v1")
    a("s_nop 1")
    a("v_cndmask_b32 v4, v5, v4, vcc")
    a("buffer_store_dword v110, v4, s[28:31], s70 offen")
    a("s_branch k1_wt")
    a.label("k1_vb")
    mainloop("XW")
    a("s_cmp_eq_u32 s16, 3")
    a("s_cbranch_scc1 k1_b1")
    a("v_mov_b32 v5, 0x3f803f80")
    a("v_cmp_eq_u32 vcc, 28, v2")
    a("v_mov_b32 v6, 0")
    a("s_nop 0")
    a("v_cndmask_b32 v6, v6, v5, vcc")
    a("v_cmp_lt_u32 s[72:73], 27, v2")
    a("s_lshl_b32 s70, s18, 8")
    a("s_add_u32 s70, s70, s46")
    a("s_lshl_b32 s70, s70, 11")
    a(f"s_add_u32 s70, s70, {VF}")
    a("v_lshlrev_b32 v4, 4, v1")
    for g in range(4):
        d = ACC + 16*g
        for q in range(8):
            a(f"v_cvt_pk_bf16_f32 v{P+8*g+q}, v{d+2*q}, v{d+2*q+1}")
        for q in range(8):
            a(f"v_cndmask_b32 v{P+8*g+q}, v{P+8*g+q}, v6, s[72:73]")
        a(f"buffer_store_dwordx4 {vr(P+8*g,4)}, v4, s[28:31], s70 offen")
        a(f"buffer_store_dwordx4 {vr(P+8*g+4,4)}, v4, s[28:31], s70 offen offset:1024")
        if g < 3:
            a("s_add_u32 s70, s70, 131072")
    a("s_branch k1_wt")
    a.label("k1_b1")
    a("v_lshlrev_b32 v4, 12, v2")
    a("v_lshl_add_u32 v4, v3, 4, v4")
    a("v_mov_b32 v5, 0x40000000")
    a("v_cmp_gt_u32 vcc, 28, v2")
    a("s_mul_i32 s70, s18, 112*4096")
    a("s_lshl_b32 s71, s46, 6")
    a("v_cndmask_b32 v4, v5, v4, vcc")
    a("s_add_u32 s70, s70, s71")
    a(f"s_add_u32 s70, s70, {ZF}")
    for g in range(4):
        d = ACC + 16*g
        for q in range(8):
            a(f"v_cvt_pk_bf16_f32 v{P+8*g+q}, v{d+2*q}, v{d+2*q+1}")
        a(f"buffer_store_dwordx4 {vr(P+8*g,4)}, v4, s[28:31], s70 offen")
        a(f"buffer_store_dwordx4 {vr(P+8*g+4,4)}, v4, s[28:31], s70 offen offset:32")
        if g < 3:
            a("s_add_u32 s70, s70, 28*4096")
    a.label("k1_wt")
    for r in range(16):
        a(f"v_lshlrev_b32 v{WTR+r}, 16, v{WTR+r}")
    for r in range(16):
        a(f"v_mul_f32 v{WTR+r}, v235, v{WTR+r}")
    for part in range(2):
        for aa in range(2):
            a(f"buffer_store_dwordx4 {vr(WTR+(part*2+aa)*4,4)}, v234, s[28:31], s64 offen offset:{part*1024+aa*16}")
    a.label("k1_end")
    a("s_endpgm")

def desc(name, vgpr, sgpr=96):
    return f""".section .rodata,"a"
.p2align 6
.amdhsa_kernel {name}
  .amdhsa_next_free_vgpr {vgpr}
  .amdhsa_next_free_sgpr {sgpr}
  .amdhsa_accum_offset {(vgpr+3)//4*4}
  .amdhsa_group_segment_fixed_size 0
  .amdhsa_kernarg_size 72
  .amdhsa_user_sgpr_count 2
  .amdhsa_user_sgpr_kernarg_segment_ptr 1
  .amdhsa_system_sgpr_workgroup_id_x 1
  .amdhsa_float_denorm_mode_32 3
.end_amdhsa_kernel
"""
```

```python
from asmlib import *
from common import *
from k1 import srd

B2BASE = 65536
TB2_F32 = 0; TB2_F64 = 6144; TB2_TW1 = 30720; TB2_TW2 = 47104; TB2_SIZE = 63488
LDS_W = B2BASE + TB2_SIZE
LDS_MX = LDS_W + 16384
K2_LDS = LDS_MX + 4096
NB0 = [17, 17, 17, 13]
NB1 = [17, 17, 17, 13]
BMAX = 48.0

Q0 = 8; Q1 = 16; KB_ = [24, 32]; VB_ = [40, 48]; S0 = 64; S1 = 80; P0 = 96; P1 = 104; O0 = 112; O1 = 128

def mf(d, a_, b_, c):
    return f"v_mfma_f32_32x32x16_bf16 {d}, {a_}, {b_}, {c}"

def expcvt(a, S, P, grp):
    r = S + 4*grp
    for k in range(4):
        a(f"v_exp_f32 v{r+k}, v{r+k}")
    a(f"v_cvt_pk_bf16_f32 v{P+2*grp}, v{r}, v{r+1}")
    a(f"v_cvt_pk_bf16_f32 v{P+2*grp+1}, v{r+2}, v{r+3}")

def block(a, par):
    Kc, Kn = KB_[par], KB_[1-par]
    Vc, Vp = VB_[par], VB_[1-par]
    s0 = vr(S0, 16); s1 = vr(S1, 16); o0 = vr(O0, 16); o1 = vr(O1, 16)
    a(mf(s1, vr(Kc, 4), vr(Q1, 4), "0"))
    expcvt(a, S0, P0, 0)
    a(mf(s1, vr(Kc+4, 4), vr(Q1+4, 4), s1))
    expcvt(a, S0, P0, 1)
    a(f"buffer_load_dwordx4 {vr(Kc,4)}, v2, s[4:7], s18 offen")
    a(f"buffer_load_dwordx4 {vr(Kc+4,4)}, v2, s[4:7], s18 offen offset:1024")
    a(mf(o1, vr(Vp, 4), vr(P1, 4), o1))
    expcvt(a, S0, P0, 2)
    a(mf(o1, vr(Vp+4, 4), vr(P1+4, 4), o1))
    a(f"buffer_load_dwordx4 {vr(Vp,4)}, v2, s[4:7], s19 offen")
    a(f"buffer_load_dwordx4 {vr(Vp+4,4)}, v2, s[4:7], s19 offen offset:1024")
    expcvt(a, S0, P0, 3)
    a("s_waitcnt vmcnt(6)")
    a(mf(s0, vr(Kn, 4), vr(Q0, 4), "0"))
    expcvt(a, S1, P1, 0)
    a(mf(s0, vr(Kn+4, 4), vr(Q0+4, 4), s0))
    a("s_add_u32 s18, s18, 2048")
    a("s_add_u32 s19, s19, 2048")
    expcvt(a, S1, P1, 1)
    a("s_waitcnt vmcnt(4)")
    a(mf(o0, vr(Vc, 4), vr(P0, 4), o0))
    expcvt(a, S1, P1, 2)
    a(mf(o0, vr(Vc+4, 4), vr(P0+4, 4), o0))
    a("s_sub_u32 s17, s17, 1")
    expcvt(a, S1, P1, 3)

def cmul_stage(a, Cre, Cim, Dre, Dim, vbase, off0, T, lgkm_pre=0):
    for q in range(4):
        a(f"ds_read_b128 {vr(T+8*q,4)}, v{vbase} offset:{off0+(2*q)*1024}")
        a(f"ds_read_b128 {vr(T+8*q+4,4)}, v{vbase} offset:{off0+(2*q+1)*1024}")
    t = T + 32
    for q in range(4):
        a(f"s_waitcnt lgkmcnt({2*(3-q)})")
        for h in range(2):
            re = vr(Cre+4*q+2*h, 2); im = vr(Cim+4*q+2*h, 2)
            c = vr(T+8*q+2*h, 2); s = vr(T+8*q+4+2*h, 2)
            t1 = vr(t+4*h, 2); t2 = vr(t+4*h+2, 2)
            a(f"v_pk_mul_f32 {t1}, {re}, {c}")
            a(f"v_pk_mul_f32 {t2}, {re}, {s}")
        for h in range(2):
            re = vr(Cre+4*q+2*h, 2); im = vr(Cim+4*q+2*h, 2)
            c = vr(T+8*q+2*h, 2); s = vr(T+8*q+4+2*h, 2)
            t1 = vr(t+4*h, 2); t2 = vr(t+4*h+2, 2)
            a(f"v_pk_fma_f32 {t1}, {im}, {s}, {t1} neg_lo:[1,0,0] neg_hi:[1,0,0]")
            a(f"v_pk_fma_f32 {t2}, {im}, {c}, {t2}")
        for h in range(2):
            a(f"v_cvt_pk_bf16_f32 v{Dre+2*q+h}, v{t+4*h}, v{t+4*h+1}")
            a(f"v_cvt_pk_bf16_f32 v{Dim+2*q+h}, v{t+4*h+2}, v{t+4*h+3}")

def gen_b2(a):
    ZR = 8; ZI = 24
    CRE = [64, 80]; CIM = [96, 112]
    DRE = 128; DIM = 144
    CF = 160
    T = 208
    VB0 = 4; VB1 = 5; VZ = 6; VZI = 7
    NOP = "s_nop 7\ns_nop 3"
    a.c("---- B2: FFT - filter - IFFT of column s2 ----")
    a("s_setprio 2")
    a("s_lshl_b32 s20, s2, 1")
    a("s_cmp_eq_u32 s2, 224")
    a("s_cselect_b32 s20, 1, s20")
    a("s_lshl_b32 s21, s2, 1")
    a("s_add_u32 s21, s21, 1")
    a("s_lshl_b32 s20, s20, 12")
    a("s_lshl_b32 s21, s21, 12")
    a("s_cmp_eq_u32 s2, 224")
    a("s_cselect_b32 s21, 0x40000000, s21")
    a("s_cmp_eq_u32 s2, 0")
    a("s_cselect_b32 s21, 0x40000000, s21")
    a("v_and_b32 v3, 31, v1")
    a(f"v_lshrrev_b32 v{VZ}, 5, v1")
    a(f"v_lshlrev_b32 v{VZ}, 4, v{VZ}")
    a(f"v_lshl_add_u32 v{VZ}, v3, 6, v{VZ}")
    a(f"s_add_u32 s22, s20, {ZF}")
    a(f"s_add_u32 s23, s21, {ZF}")
    for mt in range(2):
        for ks in range(2):
            a(f"buffer_load_dwordx4 {vr(ZR+4*(2*mt+ks),4)}, v{VZ}, s[4:7], s22 offen offset:{mt*2048+ks*32}")
    for mt in range(2):
        for ks in range(2):
            a(f"buffer_load_dwordx4 {vr(ZI+4*(2*mt+ks),4)}, v{VZ}, s[4:7], s23 offen offset:{mt*2048+ks*32}")
    def dma(srd_, goff_sreg_init, ldsoff, n):
        a(f"s_mov_b32 s24, {goff_sreg_init}")
        a(f"s_mov_b32 m0, {ldsoff}")
        for k in range(n):
            if k and k % 4 == 0:
                a("s_add_u32 s24, s24, 4096")
                a("s_add_u32 m0, m0, 4096")
            if k % 4 == 0:
                a("s_nop 0")
            a(f"buffer_load_dwordx4 v2, {srd_}, s24 offen offset:{(k%4)*1024} lds")
    dma("s[8:11]", TB2_F32, B2BASE + TB2_F32, 6)
    dma("s[8:11]", TB2_TW1, B2BASE + TB2_TW1, 16)
    dma("s[8:11]", TB2_F64, B2BASE + TB2_F64, 24)
    a(f"v_add_u32 v{VB0}, {B2BASE}, v2")
    a(f"v_add_u32 v{VB1}, {LDS_W}, v2")
    a("s_waitcnt vmcnt(40)")
    a("s_lshl_b32 s25, s2, 14")
    a(f"s_add_u32 s25, s25, {WT}")
    dma("s[4:7]", "s25", LDS_W, 16)
    for f in range(6):
        a(f"ds_read_b128 {vr(CF+4*f,4)}, v{VB0} offset:{TB2_F32+f*1024}")
    a("s_waitcnt lgkmcnt(0)")
    Fr = [vr(CF, 4), vr(CF+4, 4)]; Fi = [vr(CF+8, 4), vr(CF+12, 4)]; nFi = [vr(CF+16, 4), vr(CF+20, 4)]
    for mt in range(2):
        cre = vr(CRE[mt], 16); cim = vr(CIM[mt], 16)
        zr = [vr(ZR+4*(2*mt+ks), 4) for ks in range(2)]; zi = [vr(ZI+4*(2*mt+ks), 4) for ks in range(2)]
        a(mf(cre, zr[0], Fr[0], "0")); a(mf(cim, zr[0], Fi[0], "0"))
        a(mf(cre, zr[1], Fr[1], cre)); a(mf(cim, zr[1], Fi[1], cim))
        a(mf(cre, zi[0], nFi[0], cre)); a(mf(cim, zi[0], Fr[0], cim))
        a(mf(cre, zi[1], nFi[1], cre)); a(mf(cim, zi[1], Fr[1], cim))
    a("s_waitcnt vmcnt(40)")
    a(NOP)
    for mt in range(2):
        cmul_stage(a, CRE[mt], CIM[mt], DRE+8*mt, DIM+8*mt, VB0, TB2_TW1 + mt*8192, T)
    dma("s[8:11]", TB2_TW2, B2BASE + TB2_TW2, 16)
    a("s_waitcnt vmcnt(32)")
    def big_step(data_is_A, conj):
        seq = [(lt, kap) for lt in range(2) for kap in range(4)]
        def rd(idx):
            lt, kap = seq[idx]
            buf = CF + 12*(idx % 4)
            for v in range(3):
                a(f"ds_read_b128 {vr(buf+4*v,4)}, v{VB0} offset:{TB2_F64+((lt*4+kap)*3+v)*1024}")
        rd(0); rd(1); rd(2)
        for idx, (lt, kap) in enumerate(seq):
            rem = min(len(seq)-1-idx, 2)
            a(f"s_waitcnt lgkmcnt({3*rem})")
            buf = CF + 12*(idx % 4)
            fr, fi, nfi = vr(buf, 4), vr(buf+4, 4), vr(buf+8, 4)
            dre = vr(DRE+4*kap, 4); dim = vr(DIM+4*kap, 4)
            cre = vr(CRE[lt], 16); cim = vr(CIM[lt], 16)
            c0 = "0" if kap == 0 else None
            x1, x2 = (fi, nfi) if conj else (nfi, fi)
            def m(d, k, x, c):
                return mf(d, x, k, c) if data_is_A else mf(d, k, x, c)
            a(m(cre, fr, dre, c0 or cre))
            a(m(cim, x2, dre, c0 or cim))
            a(m(cre, x1, dim, cre))
            a(m(cim, fr, dim, cim))
            if idx + 3 < len(seq):
                rd(idx + 3)
    big_step(False, False)
    a("s_waitcnt vmcnt(16)")
    a(NOP)
    for mt in range(2):
        cmul_stage(a, CRE[mt], CIM[mt], DRE+8*mt, DIM+8*mt, VB1, mt*8192, T)
    a("s_nop 1")
    big_step(True, True)
    a("s_waitcnt vmcnt(0)")
    for f in range(6):
        a(f"ds_read_b128 {vr(CF+4*f,4)}, v{VB0} offset:{TB2_F32+f*1024}")
    a(NOP)
    for nt in range(2):
        cmul_stage(a, CRE[nt], CIM[nt], DRE+8*nt, DIM+8*nt, VB0, TB2_TW2 + nt*8192, T)
    a("s_nop 1")
    for nt in range(2):
        cre = vr(CRE[nt], 16); cim = vr(CIM[nt], 16)
        dr = [vr(DRE+8*nt+4*ks, 4) for ks in range(2)]; di = [vr(DIM+8*nt+4*ks, 4) for ks in range(2)]
        a(mf(cre, dr[0], Fr[0], "0")); a(mf(cim, dr[0], nFi[0], "0"))
        a(mf(cre, dr[1], Fr[1], cre)); a(mf(cim, dr[1], nFi[1], cim))
        a(mf(cre, di[0], Fi[0], cre)); a(mf(cim, di[0], Fr[0], cim))
        a(mf(cre, di[1], Fi[1], cre)); a(mf(cim, di[1], Fr[1], cim))
    a("v_and_b32 v3, 31, v1")
    a(f"v_lshrrev_b32 v{VZ}, 5, v1")
    a(f"v_lshlrev_b32 v{VZ}, 4, v{VZ}")
    a(f"v_lshl_add_u32 v{VZ}, v3, 7, v{VZ}")
    a(f"s_add_u32 s22, s20, {ZT}")
    a(f"s_add_u32 s23, s21, {ZT}")
    a(NOP)
    for part, (C, so) in enumerate(((CRE, "s22"), (CIM, "s23"))):
        for nt in range(2):
            Pk = DRE + 16*part + 8*nt
            for q in range(8):
                a(f"v_cvt_pk_bf16_f32 v{Pk+q}, v{C[nt]+2*q}, v{C[nt]+2*q+1}")
            a("s_nop 1")
            for m in range(2):
                a(f"v_permlane32_swap_b32 v{Pk+4*m}, v{Pk+4*m+2}")
                a(f"v_permlane32_swap_b32 v{Pk+4*m+1}, v{Pk+4*m+3}")
            for m in range(2):
                a(f"buffer_store_dwordx4 {vr(Pk+4*m,4)}, v{VZ}, s[4:7], {so} offen offset:{nt*64+m*32}")
    a("s_setprio 0")

def gen_k2(a, with_b2=True):
    a.label("k2_kernel")
    a("s_cmp_ge_u32 s2, 256")
    a("s_cbranch_scc1 k2_end")
    a("s_load_dwordx2 s[12:13], s[0:1], 64")
    a("s_getpc_b64 s[14:15]")
    a("s_add_u32 s14, s14, TB2@rel32@lo+4")
    a("s_addc_u32 s15, s15, TB2@rel32@hi+12")
    a("v_lshrrev_b32 v3, 6, v0")
    a("v_and_b32 v1, 63, v0")
    a("v_readfirstlane_b32 s26, v3")
    a("v_lshlrev_b32 v2, 4, v1")
    srd(a, 8, "s14", "s15", TB2_SIZE)
    a("s_waitcnt lgkmcnt(0)")
    srd(a, 4, "s12", "s13", WS_USED)
    if with_b2:
        a("s_cmp_lg_u32 s26, 7")
        a("s_cbranch_scc1 k2_attn")
        a("s_cmp_ge_u32 s2, 225")
        a("s_cbranch_scc1 k2_attn")
        gen_b2(a)
    a.label("k2_attn")
    a("s_and_b32 s27, s2, 7")
    a("s_lshr_b32 s28, s2, 3")
    a("s_lshl_b32 s15, s27, 1")
    a("s_and_b32 s29, s28, 1")
    a("s_or_b32 s15, s15, s29")
    a("s_lshr_b32 s16, s28, 1")
    a("s_and_b32 s13, s26, 3")
    a("s_lshr_b32 s14, s26, 2")
    a("s_lshl_b32 s30, s15, 8")
    a(f"s_add_u32 s31, s30, {NRM+4096}")
    a("s_lshl_b32 s29, s16, 4")
    a("s_add_u32 s30, s30, s29")
    a(f"s_add_u32 s30, s30, {NRM}")
    a("v_lshlrev_b32 v56, 2, v1")
    a("v_and_b32 v57, 3, v1")
    a("v_lshlrev_b32 v57, 2, v57")
    a("buffer_load_dword v58, v56, s[4:7], s31 offen")
    a("buffer_load_dword v59, v57, s[4:7], s30 offen")
    a("s_lshl_b32 s32, s15, 6")
    a("s_lshl_b32 s33, s16, 2")
    a("s_lshl_b32 s34, s14, 1")
    a("s_add_u32 s33, s33, s34")
    a("s_add_u32 s34, s32, s33")
    a("s_lshl_b32 s34, s34, 11")
    for t in range(2):
        for m in range(2):
            a(f"buffer_load_dwordx4 {vr(Q0+8*t+4*m,4)}, v2, s[4:7], s34 offen offset:{t*2048+m*1024}")
    assert NB0[:3] == [NB0[0]]*3 and NB1[:3] == [NB1[0]]*3
    a(f"s_mov_b32 s35, {NB0[0]}")
    a(f"s_cmp_eq_u32 s14, 1")
    a(f"s_cselect_b32 s35, {NB1[0]}, s35")
    a("s_mul_i32 s36, s35, s13")
    a("s_sub_u32 s17, 64, s36")
    a("s_min_u32 s17, s17, s35")
    a("s_cmp_eq_u32 s13, 3")
    a("s_cbranch_scc0 k2_cnt")
    a("s_sub_u32 s17, 64, s36")
    a.label("k2_cnt")
    a("s_add_u32 s36, s36, s32")
    a("s_lshl_b32 s36, s36, 11")
    a(f"s_add_u32 s18, s36, {KF}")
    a(f"s_add_u32 s19, s36, {VF}")
    a(f"buffer_load_dwordx4 {vr(KB_[0],4)}, v2, s[4:7], s18 offen")
    a(f"buffer_load_dwordx4 {vr(KB_[0]+4,4)}, v2, s[4:7], s18 offen offset:1024")
    a(f"buffer_load_dwordx4 {vr(KB_[1],4)}, v2, s[4:7], s18 offen offset:2048")
    a(f"buffer_load_dwordx4 {vr(KB_[1]+4,4)}, v2, s[4:7], s18 offen offset:3072")
    a(f"buffer_load_dwordx4 {vr(VB_[0],4)}, v2, s[4:7], s19 offen")
    a(f"buffer_load_dwordx4 {vr(VB_[0]+4,4)}, v2, s[4:7], s19 offen offset:1024")
    for r in range(32):
        a(f"v_mov_b32 v{O0+r}, 0")
    for r in range(8):
        a(f"v_mov_b32 v{P1+r}, 0")
        a(f"v_mov_b32 v{VB_[1]+r}, 0")
    a("s_waitcnt vmcnt(10)")
    for sh in (1, 2, 4, 8):
        a(f"v_max_u32_dpp v58, v58, v58 row_shr:{sh} row_mask:0xf bank_mask:0xf")
        a(f"v_max_u32_dpp v59, v59, v59 row_shr:{sh} row_mask:0xf bank_mask:0xf")
        a("s_nop 0")
    a("v_max_u32_dpp v58, v58, v58 row_bcast:15 row_mask:0xa bank_mask:0xf")
    a("s_nop 1")
    a("v_max_u32_dpp v58, v58, v58 row_bcast:31 row_mask:0xc bank_mask:0xf")
    a("s_nop 0")
    a("v_readlane_b32 s37, v58, 63")
    a("v_readlane_b32 s38, v59, 15")
    a("s_nop 1")
    a("v_mov_b32 v58, s37")
    a("v_mul_f32 v58, s38, v58")
    a("v_sqrt_f32 v58, v58")
    a(f"v_mov_b32 v59, {f2u(0.25):#x}")
    a(f"v_mov_b32 v60, {f2u(1.02):#x}")
    a("v_fma_f32 v58, v58, v60, v59")
    a("s_nop 0")
    a("v_readfirstlane_b32 s37, v58")
    a("s_nop 1")
    a(f"s_cmp_gt_u32 s37, {f2u(BMAX):#x}")
    a("s_cbranch_scc1 k2_slow")
    a("s_lshr_b32 s37, s37, 16")
    a("s_add_u32 s37, s37, 1")
    a("s_or_b32 s37, s37, 0x8000")
    a("s_waitcnt vmcnt(6)")
    a("s_mov_b32 exec_lo, 0")
    a(f"v_mov_b32 v{Q0+6}, s37")
    a(f"v_mov_b32 v{Q1+6}, s37")
    a("s_mov_b32 exec_lo, -1")
    a("s_add_u32 s18, s18, 4096")
    a("s_add_u32 s19, s19, 2048")
    a("s_waitcnt vmcnt(4)")
    a(mf(vr(S0, 16), vr(KB_[0], 4), vr(Q0, 4), "0"))
    a(mf(vr(S0, 16), vr(KB_[0]+4, 4), vr(Q0+4, 4), vr(S0, 16)))
    a("s_nop 7")
    a("s_nop 2")
    a.label("k2_loop")
    l0 = len(a.L)
    block(a, 0)
    a("s_cmp_eq_u32 s17, 0")
    a("s_cbranch_scc1 k2_exit0")
    block(a, 1)
    a("s_cmp_lg_u32 s17, 0")
    a("s_cbranch_scc1 k2_loop")
    loop_lines = a.L[l0:]
    a.loops = getattr(a, "loops", []) + [loop_lines]
    a(mf(vr(O1, 16), vr(VB_[1], 4), vr(P1, 4), vr(O1, 16)))
    a(mf(vr(O1, 16), vr(VB_[1]+4, 4), vr(P1+4, 4), vr(O1, 16)))
    a("s_branch k2_fin")
    a.label("k2_exit0")
    a(mf(vr(O1, 16), vr(VB_[0], 4), vr(P1, 4), vr(O1, 16)))
    a(mf(vr(O1, 16), vr(VB_[0]+4, 4), vr(P1+4, 4), vr(O1, 16)))
    a.label("k2_fin")
    a("s_nop 7")
    a("s_nop 3")
    a.label("k2_red")
    a("s_lshl_b32 s37, s26, 13")
    a("v_add_u32 v56, s37, v2")
    for t in range(2):
        for q in range(4):
            a(f"ds_write_b128 v56, {vr(O0+16*t+4*q,4)} offset:{(t*4+q)*1024}")
    a("s_lshr_b32 s38, s13, 1")
    a("s_and_b32 s39, s13, 1")
    a("s_lshl_b32 s40, s14, 15")
    a("s_lshl_b32 s41, s38, 12")
    a("s_add_u32 s40, s40, s41")
    a("s_lshl_b32 s41, s39, 11")
    a("s_add_u32 s41, s41, s40")
    a("v_add_u32 v57, s41, v2")
    a("v_and_b32 v58, 31, v1")
    a("v_lshlrev_b32 v58, 4, v58")
    a("s_add_u32 s40, s40, 3*1024+512")
    a("v_add_u32 v58, s40, v58")
    a("s_waitcnt lgkmcnt(0)")
    a("s_barrier")
    R = 64
    for k in range(4):
        a(f"ds_read_b32 v{60+k}, v58 offset:{k*8192}")
    for k in range(4):
        a(f"ds_read_b128 {vr(R+8*k,4)}, v57 offset:{k*8192}")
        a(f"ds_read_b128 {vr(R+8*k+4,4)}, v57 offset:{k*8192+1024}")
    a("s_add_u32 s42, s33, s38")
    a("s_lshl_b32 s42, s42, 4")
    a("s_add_u32 s42, s42, s15")
    a("s_lshl_b32 s42, s42, 1")
    a("s_add_u32 s42, s42, s39")
    a("s_lshl_b32 s42, s42, 10")
    a(f"s_add_u32 s42, s42, {OF}")
    a("s_waitcnt lgkmcnt(8)")
    a("v_add_f32 v60, v60, v61")
    a("v_add_f32 v62, v62, v63")
    a("v_add_f32 v60, v60, v62")
    a("v_rcp_f32 v60, v60")
    a("s_waitcnt lgkmcnt(0)")
    for r in range(8):
        a(f"v_add_f32 v{R+r}, v{R+r}, v{R+8+r}")
        a(f"v_add_f32 v{R+16+r}, v{R+16+r}, v{R+24+r}")
    for r in range(8):
        a(f"v_add_f32 v{R+r}, v{R+r}, v{R+16+r}")
    for r in range(8):
        a(f"v_mul_f32 v{R+r}, v{R+r}, v60")
    for q in range(4):
        a(f"v_cvt_pk_bf16_f32 v{96+q}, v{R+2*q}, v{R+2*q+1}")
    a("s_cmp_eq_u32 s39, 1")
    a("s_cselect_b32 s45, -1, 0")
    a("s_mov_b32 s44, 0")
    a("v_cndmask_b32 v98, v98, 0, s[44:45]")
    a("v_cndmask_b32 v99, v99, 0, s[44:45]")
    a("buffer_store_dwordx4 v[96:99], v2, s[4:7], s42 offen")
    a.label("k2_end")
    a("s_endpgm")
    a.label("k2_slow")
    M0_, M1_ = 56, 57
    a(f"v_mov_b32 v{M0_}, 0xff7fffff")
    a(f"v_mov_b32 v{M1_}, 0xff7fffff")
    a.label("k2_sloop")
    a(f"buffer_load_dwordx4 {vr(KB_[0],4)}, v2, s[4:7], s18 offen")
    a(f"buffer_load_dwordx4 {vr(KB_[0]+4,4)}, v2, s[4:7], s18 offen offset:1024")
    a(f"buffer_load_dwordx4 {vr(VB_[0],4)}, v2, s[4:7], s19 offen")
    a(f"buffer_load_dwordx4 {vr(VB_[0]+4,4)}, v2, s[4:7], s19 offen offset:1024")
    a("s_waitcnt vmcnt(0)")
    for t, (Q, S_, P_, O_, M_) in enumerate(((Q0, S0, P0, O0, M0_), (Q1, S1, P1, O1, M1_))):
        s = vr(S_, 16); o = vr(O_, 16)
        a(mf(s, vr(KB_[0], 4), vr(Q, 4), "0"))
        a(mf(s, vr(KB_[0]+4, 4), vr(Q+4, 4), s))
        a("s_nop 7\ns_nop 7")
        a(f"v_max3_f32 v58, v{S_}, v{S_+1}, v{S_+2}")
        for r in range(3, 15, 2):
            a(f"v_max3_f32 v58, v58, v{S_+r}, v{S_+r+1}")
        a(f"v_max_f32 v58, v58, v{S_+15}")
        a("v_mov_b32 v59, v58")
        a("s_nop 1")
        a("v_permlane32_swap_b32 v58, v59")
        a("v_max_f32 v58, v58, v59")
        a(f"v_max_f32 v58, v58, v{M_}")
        a(f"v_sub_f32 v59, v{M_}, v58")
        a("v_exp_f32 v59, v59")
        a(f"v_mov_b32 v{M_}, v58")
        for r in range(16):
            a(f"v_mul_f32 v{O_+r}, v{O_+r}, v59")
        for r in range(16):
            a(f"v_sub_f32 v{S_+r}, v{S_+r}, v58")
        for g in range(4):
            expcvt(a, S_, P_, g)
        a("s_nop 1")
        a(mf(o, vr(VB_[0], 4), vr(P_, 4), o))
        a(mf(o, vr(VB_[0]+4, 4), vr(P_+4, 4), o))
    a("s_nop 7\ns_nop 7")
    a("s_add_u32 s18, s18, 2048")
    a("s_add_u32 s19, s19, 2048")
    a("s_sub_u32 s17, s17, 1")
    a("s_cmp_lg_u32 s17, 0")
    a("s_cbranch_scc1 k2_sloop")
    a("s_lshl_b32 s37, s26, 9")
    a(f"s_add_u32 s37, s37, {LDS_MX}")
    a("v_lshlrev_b32 v58, 2, v1")
    a("v_add_u32 v59, s37, v58")
    a(f"ds_write_b32 v59, v{M0_}")
    a(f"ds_write_b32 v59, v{M1_} offset:256")
    a("s_lshl_b32 s37, s14, 11")
    a(f"s_add_u32 s37, s37, {LDS_MX}")
    a("v_add_u32 v59, s37, v58")
    a("s_waitcnt lgkmcnt(0)")
    a("s_barrier")
    for t, (O_, M_) in enumerate(((O0, M0_), (O1, M1_))):
        for k in range(4):
            a(f"ds_read_b32 v{60+k}, v59 offset:{k*512+t*256}")
        a("s_waitcnt lgkmcnt(0)")
        a("v_max3_f32 v60, v60, v61, v62")
        a("v_max_f32 v60, v60, v63")
        a(f"v_sub_f32 v60, v{M_}, v60")
        a("v_exp_f32 v60, v60")
        a("s_nop 0")
        for r in range(16):
            a(f"v_mul_f32 v{O_+r}, v{O_+r}, v60")
    a("s_branch k2_red")
```

```python
from asmlib import *
from common import *
from k1 import srd

K3_LDS = 456*128
STAGES_A = [6, 8, 9, 9]
STAGES_B = [6, 8, 7, 7]

def gen_k3(a):
    X0 = 16; ACC = 144; WF = 176
    a.label("k3_kernel")
    a("s_cmp_ge_u32 s2, 256")
    a("s_cbranch_scc1 k3_end")
    a("s_load_dwordx2 s[4:5], s[0:1], 16")
    a("s_load_dwordx2 s[6:7], s[0:1], 48")
    a("s_load_dwordx2 s[8:9], s[0:1], 64")
    a("s_getpc_b64 s[10:11]")
    a("s_add_u32 s10, s10, TF@rel32@lo+4")
    a("s_addc_u32 s11, s11, TF@rel32@hi+12")
    a("s_and_b32 s40, s2, 7")
    a("s_lshr_b32 s41, s2, 3")
    a("s_lshr_b32 s16, s40, 2")
    a("s_and_b32 s17, s40, 3")
    a("v_lshrrev_b32 v4, 6, v0")
    a("v_and_b32 v1, 63, v0")
    a("v_readfirstlane_b32 s19, v4")
    a("v_and_b32 v2, 31, v1")
    a("v_lshrrev_b32 v3, 5, v1")
    a("v_lshrrev_b32 v6, 3, v1")
    a("v_and_b32 v7, 7, v1")
    a("v_bfe_u32 v8, v1, 4, 1")
    a("v_lshlrev_b32 v8, 2, v8")
    a("v_xor_b32 v7, v7, v8")
    a("v_and_b32 v9, 15, v1")
    a("v_lshrrev_b32 v9, 2, v9")
    a("v_and_b32 v10, 3, v1")
    a("v_bfe_u32 v11, v1, 4, 1")
    a("v_lshlrev_b32 v11, 5, v11")
    a("v_lshl_add_u32 v10, v10, 3, v11")
    a("v_bfe_u32 v11, v9, 1, 1")
    a("v_lshlrev_b32 v11, 2, v11")
    a("s_waitcnt lgkmcnt(0)")
    srd(a, 28, "s8", "s9", WS_USED)
    srd(a, 32, "s6", "s7", S*896*2)
    a("s_cmp_eq_u32 s16, 1")
    a("s_cbranch_scc1 k3_b3")

    def trbases(gstride, rowpart_code):
        rowpart_code()
        for g in range(2):
            a(f"v_add_u32 v13, {gstride*g}, v10")
            a("v_lshrrev_b32 v5, 4, v13")
            a("v_xor_b32 v5, v5, v11")
            a("v_and_b32 v13, 15, v13")
            a("v_lshl_add_u32 v5, v5, 4, v13")
            a(f"v_add_u32 v{14+g}, v5, v12")

    def mainloop(nks, stages, ndma_per_wave, dma_of_stage, roff, order, extra_first):
        bounds = []; acc = 0
        for n in stages:
            acc += n; bounds.append(acc)
        assert acc == nks
        def stage_of(ks):
            for si, b in enumerate(bounds):
                if ks < b: return si
        def stage_wait(si):
            a(f"s_waitcnt vmcnt({issue_rem[si]})")
            a("s_barrier")
        def trread(ks, g, buf):
            o1, o2 = roff(ks)
            a(f"ds_read_b64_tr_b16 {vr(buf,2)}, v{14+g} offset:{o1}")
            a(f"ds_read_b64_tr_b16 {vr(buf+2,2)}, v{14+g} offset:{o2}")
        issue_rem = dma_of_stage
        seq = [(ks, g) for ks in range(nks) for g in range(2)]
        DEPTH = 4
        def buf(idx): return WF + 4*(idx % DEPTH)
        cur_stage = 0
        stage_wait(0)
        issued = 0
        def try_issue(upto):
            nonlocal issued, cur_stage
            while issued < min(upto, len(seq)):
                ks, g = seq[issued]
                if stage_of(ks) != cur_stage:
                    cur_stage = stage_of(ks)
                    stage_wait(cur_stage)
                trread(ks, g, buf(issued))
                issued += 1
        try_issue(DEPTH - 1)
        for idx, (ks, g) in enumerate(seq):
            try_issue(idx + DEPTH - 0 if False else idx + DEPTH - 1 + 0)
            out = issued - idx - 1
            a(f"s_waitcnt lgkmcnt({2*out})")
            x = vr(X0+4*ks, 4); w = vr(buf(idx), 4); d = vr(ACC+16*g, 16)
            c = "0" if ks == 0 else d
            if order == "WX":
                a(f"v_mfma_f32_32x32x16_bf16 {d}, {w}, {x}, {c}")
            else:
                a(f"v_mfma_f32_32x32x16_bf16 {d}, {x}, {w}, {c}")
            try_issue(idx + DEPTH)
        a("s_nop 7")
        a("s_nop 3")

    def epilogue():
        a("v_mov_b32 v6, 0x40000000")
        a("v_cmp_eq_u32 vcc, 1, v3")
        a("s_nop 1")
        a("v_cndmask_b32 v5, v4, v6, vcc")
        for g in range(2):
            d = ACC + 16*g
            for q in range(8):
                a(f"v_cvt_pk_bf16_f32 v{X0+8*g+q}, v{d+2*q}, v{d+2*q+1}")
            for q in range(4):
                va = "v5" if q == 3 else "v4"
                a(f"buffer_store_dwordx2 {vr(X0+8*g+2*q,2)}, {va}, s[32:35], s45 offen offset:{16*q}")
            if g == 0:
                a("s_add_u32 s45, s45, s44")

    a("s_lshl_b32 s20, s17, 2")
    a("s_and_b32 s21, s41, 3")
    a("s_add_u32 s20, s20, s21")
    a("s_lshr_b32 s21, s41, 2")
    a("s_mul_i32 s22, s21, 112")
    a("s_add_u32 s24, s4, s22")
    a("s_addc_u32 s25, s5, 0")
    a(f"s_sub_u32 s23, {448*896}, s22")
    srd(a, 24, "s24", "s25", "s23")
    a("s_lshl_b32 s22, s20, 2")
    a("s_add_u32 s22, s22, s19")
    a("s_lshl_b32 s46, s22, 15")
    a(f"s_add_u32 s46, s46, {OF}")
    a("v_lshlrev_b32 v4, 4, v1")
    a("s_movk_i32 s47, 896")
    a("v_mul_lo_u32 v5, v6, s47")
    a("v_lshl_add_u32 v5, v7, 4, v5")
    a("v_cmp_gt_u32 vcc, 7, v7")
    a("v_mov_b32 v8, 0x40000000")
    a("s_nop 0")
    a("v_cndmask_b32 v5, v8, v5, vcc")
    a("s_mul_i32 s53, s19, 8*896")
    a("s_lshl_b32 s55, s19, 10")
    a("s_mov_b32 m0, s55")
    a("s_nop 0")
    order = []
    xi = 0; ti = 0
    while xi < 32 or ti < 14:
        if ti < 14 and (ti * 32 <= xi * 14 or xi >= 32):
            order.append(("d", ti)); ti += 1
        else:
            order.append(("x", xi)); xi += 1
    for kind, n in order:
        if kind == "x":
            if n % 4 == 0 and n > 0:
                a("s_add_u32 s46, s46, 4096")
            a(f"buffer_load_dwordx4 {vr(X0+4*n,4)}, v4, s[28:31], s46 offen offset:{(n%4)*1024}")
        else:
            a("buffer_load_dwordx4 v5, s[24:27], s53 offen lds")
            if n < 13:
                a(f"s_add_u32 s53, s53, {32*896}")
                a("s_add_u32 m0, m0, 4096")
    a("v_mov_b32 v8, 0")
    a("v_lshlrev_b32 v12, 2, v0")
    a(f"ds_write_b32 v12, v8 offset:{448*128}")
    bounds = []; acc = 0
    for n in STAGES_A:
        acc += n; bounds.append(acc)
    rem = []
    for b in bounds:
        klast = b - 1
        h, m = klast // 2, klast % 2
        rows = min(448, 28*h + 16*m + 16)
        tneed = (rows + 31) // 32
        pos = max(order.index(("x", klast)), order.index(("d", tneed-1)))
        rem.append(len(order) - 1 - pos)
    def rp_a():
        a("v_lshl_add_u32 v12, v3, 2, v9")
        a("v_lshlrev_b32 v12, 7, v12")
    trbases(56, rp_a)
    a("s_waitcnt lgkmcnt(0)")
    mainloop(32, STAGES_A, 14, rem, lambda k: ((28*(k//2)+16*(k % 2))*128, (28*(k//2)+16*(k % 2)+8)*128), "WX", 0)
    a("s_lshl_b32 s22, s20, 7")
    a("s_lshl_b32 s23, s19, 5")
    a("s_add_u32 s22, s22, s23")
    a("s_mul_i32 s45, s22, 1792")
    a("s_mul_i32 s23, s21, 112")
    a("s_add_u32 s45, s45, s23")
    a("s_movk_i32 s44, 56")
    a("s_movk_i32 s47, 1792")
    a("v_mul_lo_u32 v4, v2, s47")
    a("v_lshl_add_u32 v4, v3, 3, v4")
    epilogue()
    a("s_endpgm")
    a.label("k3_b3")
    a("s_lshl_b32 s20, s17, 3")
    a("s_and_b32 s21, s41, 7")
    a("s_add_u32 s20, s20, s21")
    a("s_lshr_b32 s21, s41, 3")
    a("s_lshl_b32 s22, s20, 7")
    a(f"s_add_u32 s22, s22, {ZT}")
    a("s_add_u32 s24, s8, s22")
    a("s_addc_u32 s25, s9, 0")
    a(f"s_sub_u32 s23, {WS_USED}, s22")
    srd(a, 24, "s24", "s25", "s23")
    srd(a, 36, "s10", "s11", 448*896)
    a("s_mul_i32 s22, s21, 112")
    a("s_mul_i32 s23, s19, 28")
    a("s_add_u32 s22, s22, s23")
    a("s_mul_i32 s46, s22, 896")
    a("s_movk_i32 s47, 896")
    a("v_mul_lo_u32 v4, v2, s47")
    a("v_lshl_add_u32 v4, v3, 4, v4")
    a("v_cmp_gt_u32 vcc, 28, v2")
    a("v_mov_b32 v8, 0x40000000")
    a("v_lshlrev_b32 v5, 12, v6")
    a("v_cndmask_b32 v4, v8, v4, vcc")
    a("v_lshl_add_u32 v5, v7, 4, v5")
    a("s_lshl_b32 s53, s19, 15")
    a("s_lshl_b32 s55, s19, 10")
    a("s_mov_b32 m0, s55")
    a("s_nop 0")
    order = []
    xi = 0; ti = 0
    while xi < 28 or ti < 14:
        if ti < 14 and (ti * 2 <= xi or xi >= 28):
            order.append(("d", ti)); ti += 1
        else:
            order.append(("x", xi)); xi += 1
    for kind, n in order:
        if kind == "x":
            a(f"buffer_load_dwordx4 {vr(X0+4*n,4)}, v4, s[36:39], s46 offen offset:{32*n}")
        else:
            a("buffer_load_dwordx4 v5, s[24:27], s53 offen lds")
            if n < 13:
                a(f"s_add_u32 s53, s53, {32*4096}")
                a("s_add_u32 m0, m0, 4096")
    bounds = []; acc = 0
    for n in STAGES_B:
        acc += n; bounds.append(acc)
    rem = []
    for b in bounds:
        klast = b - 1
        tneed = (16*b + 31) // 32
        pos = max(order.index(("x", klast)), order.index(("d", tneed-1)))
        rem.append(len(order) - 1 - pos)
    def rp_b():
        a("v_lshl_add_u32 v12, v3, 3, v9")
        a("v_lshlrev_b32 v12, 7, v12")
    trbases(64, rp_b)
    mainloop(28, STAGES_B, 14, rem, lambda k: (16*k*128, (16*k+4)*128), "XW", 0)
    a("s_lshl_b32 s22, s20, 6")
    a("s_mul_i32 s45, s22, 1792")
    a("s_mul_i32 s23, s21, 224")
    a("s_add_u32 s45, s45, s23")
    a("s_mul_i32 s23, s19, 56")
    a("s_add_u32 s45, s45, s23")
    a("s_add_u32 s45, s45, 896")
    a("s_mov_b32 s44, 32*1792")
    a("s_movk_i32 s47, 1792")
    a("v_mul_lo_u32 v4, v2, s47")
    a("v_lshl_add_u32 v4, v3, 3, v4")
    epilogue()
    a.label("k3_end")
    a("s_endpgm")
```

```python
from common import *
def gen_tables():
    L = []
    L.append('.section .rodata,"a"')
    L.append(".p2align 8")
    for m in range(448):
        L.append(f".set C{m}, {bf16bits(np.cos(2*np.pi*m/448))}")
    L.append(""".altmacro
.macro EMIT2 a, b
.long C\\a | (C\\b << 16)
.endm
TF:
.set d, 0
.rept 448
 EMIT2 0, %((224*d) % 448)
 .set c, 1
 .rept 223
  EMIT2 %((c*d) % 448), %((c*d+112) % 448)
  .set c, c+1
 .endr
 .set d, d+1
.endr
.noaltmacro""")
    return "\n".join(L) + "\n"

def tf_numpy():
    d = np.arange(448)
    F = np.zeros((448, 448))
    F[:, 0] = 1; F[:, 1] = np.cos(2*np.pi*224*d/448)
    for c in range(1, 224):
        F[:, 2*c] = np.cos(2*np.pi*c*d/448); F[:, 2*c+1] = -np.sin(2*np.pi*c*d/448)
    return F

def frag_const(M, lane_base, kbase):
    out = np.zeros((64, 8), np.uint16)
    for l in range(64):
        i = l % 32; hf = l // 32
        for j in range(8):
            out[l, j] = bf16bits(M[lane_base + i][kbase + 8*(j//4) + 4*hf + (j % 4)])
    return out

def tb2_numpy():
    parts = []
    n = np.arange(32)
    a32 = -2*np.pi*np.outer(n, n)/32
    Fr, Fi = np.cos(a32), np.sin(a32)
    for M in (Fr, Fi, -Fi):
        for ks in range(2):
            parts.append(frag_const(M, 0, 16*ks).tobytes())
    n = np.arange(64)
    a64 = -2*np.pi*np.outer(n, n)/64
    Fr, Fi = np.cos(a64), np.sin(a64)
    for lt in range(2):
        for kap in range(4):
            for M in (Fr, Fi, -Fi):
                parts.append(frag_const(M, 32*lt, 32*(kap//2) + 16*(kap % 2)).tobytes())
    tw = np.zeros((2, 4, 2, 64, 4), np.float32)
    for mt in range(2):
        for q in range(4):
            for l in range(64):
                i = l % 32; hf = l // 32
                for b in range(4):
                    s2 = 32*mt + 8*q + 4*hf + b
                    th = -2*np.pi*s2*i/2048
                    tw[mt, q, 0, l, b] = np.cos(th); tw[mt, q, 1, l, b] = np.sin(th)
    parts.append(tw.tobytes())
    tw = np.zeros((2, 4, 2, 64, 4), np.float32)
    for nt in range(2):
        for q in range(4):
            for l in range(64):
                i = l % 32; hf = l // 32
                for b in range(4):
                    k1 = 8*q + 4*hf + b
                    th = 2*np.pi*(32*nt + i)*k1/2048
                    tw[nt, q, 0, l, b] = np.cos(th); tw[nt, q, 1, l, b] = np.sin(th)
    parts.append(tw.tobytes())
    return b"".join(parts)

def gen_tb2():
    data = np.frombuffer(tb2_numpy(), dtype=np.uint64)
    L = [".p2align 8", "TB2:"]
    for k in range(0, len(data), 8):
        L.append(".quad " + ",".join("0x%x" % v for v in data[k:k+8]))
    return "\n".join(L) + "\n"
```

```python
import sys
from asmlib import *
from common import *
import k1, k2, k3, tables
NAME = "concat_heads__softmax_full_mha__spectral_gfnet__prompt"
def build(which=("k1","k2","k3")):
    hdr = open("cdna_kernels/%s.s.ref" % NAME).read().split("\n")
    head = [l for l in hdr[:12] if l.startswith(";") and "@launch" not in l and "Override" not in l and "grid=ceil" not in l]
    out = head[:]
    launches = []
    if "k1" in which: launches.append("; @launch kernel=k1_kernel grid=(256,1,1) block=(256,1,1) lds=114688")
    if "k2" in which: launches.append("; @launch kernel=k2_kernel grid=(256,1,1) block=(512,1,1) lds=%d" % k2.K2_LDS)
    if "k3" in which: launches.append("; @launch kernel=k3_kernel grid=(256,1,1) block=(256,1,1) lds=%d" % k3.K3_LDS)
    out += launches
    out.append('.amdgcn_target "amdgcn-amd-amdhsa--gfx950"')
    errs = []
    descs = []
    body = []
    for nm, fn, vg in (("k1", k1.gen_k1, 240), ("k2", k2.gen_k2, 248), ("k3", k3.gen_k3, 192)):
        if nm not in which: continue
        a = Asm()
        fn(a)
        errs += check(a.L, nm)
        for lp in getattr(a, "loops", []):
            errs += check(lp + lp, nm + "-loop")
        body.append(".text\n.globl %s_kernel\n.p2align 8\n.type %s_kernel,@function\n" % (nm, nm) + a.text())
        descs.append(k1.desc(nm + "_kernel", vg))
    txt = "\n".join(out) + "\n" + "\n".join(body) + "\n" + "\n".join(descs) + tables.gen_tables() + tables.gen_tb2()
    return txt, errs
if __name__ == "__main__":
    txt, errs = build()
    for e in errs: print("HAZARD", e)
    open(sys.argv[1] if len(sys.argv) > 1 else "out.s", "w").write(txt)
    print("written", len(txt))
```

```python
from asmlib import *
from common import *
import stamps

def srd(a, s, lo, hi, size):
    a(f"s_mov_b32 s{s}, {lo}")
    a(f"s_and_b32 s{s+1}, {hi}, 0xffff")
    a(f"s_mov_b32 s{s+2}, {size}")
    a(f"s_mov_b32 s{s+3}, 0x20000")

K1_LDS = 163840
OOB = "0x40000000"

def gen_k1(a):
    ACC = 128; XA = 16; WA = 32; P = 48
    XB = 64
    WB = 76
    WTR = 96
    VXE, VXO, VW = 4, 5, 6
    a.label("k1_kernel")
    a("s_cmp_ge_u32 s2, 256")
    a("s_cbranch_scc1 k1_end")
    st = stamps.St(a, 0, "s19", "s10", "s11")
    st.start()
    a("s_load_dwordx4 s[4:7], s[0:1], 0")
    a("s_load_dwordx2 s[8:9], s[0:1], 24")
    a("s_load_dwordx4 s[12:15], s[0:1], 32")
    a("s_load_dwordx2 s[10:11], s[0:1], 64")
    a("s_getpc_b64 s[42:43]")
    a("s_add_u32 s42, s42, TF@rel32@lo+4")
    a("s_addc_u32 s43, s43, TF@rel32@hi+12")
    a("s_and_b32 s40, s2, 7")
    a("s_lshr_b32 s41, s2, 3")
    a("s_lshr_b32 s16, s40, 1")
    a("s_and_b32 s17, s40, 1")
    a("s_lshl_b32 s17, s17, 3")
    a("s_and_b32 s44, s41, 7")
    a("s_or_b32 s17, s17, s44")
    a("s_lshr_b32 s18, s41, 3")
    a("v_lshrrev_b32 v7, 6, v0")
    a("v_and_b32 v1, 63, v0")
    a("v_readfirstlane_b32 s19, v7")
    a("v_and_b32 v2, 31, v1")
    a("v_lshrrev_b32 v3, 5, v1")
    a("s_cmp_eq_u32 s16, 3")
    a("s_mov_b32 s44, 896")
    a("s_cselect_b32 s44, 57344, s44")
    a("s_mov_b32 s47, 2688")
    a("s_cselect_b32 s47, 896, s47")
    a("s_mov_b32 s45, 8*896")
    a("s_cselect_b32 s45, 512*896, s45")
    a("s_lshl_b32 s48, s17, 7")
    a("s_lshl_b32 s49, s19, 5")
    a("s_add_u32 s48, s48, s49")
    a("s_lshl_b32 s49, s17, 2")
    a("s_add_u32 s49, s49, s19")
    a("s_cmp_eq_u32 s16, 3")
    a("s_cselect_b32 s48, s49, s48")
    a("s_mul_i32 s56, s48, 896")
    a("s_add_u32 s57, s56, s45")
    a("s_add_u32 s58, s57, s45")
    a("s_add_u32 s59, s58, s45")
    a("s_lshl_b32 s60, s19, 4")
    a("s_mul_i32 s60, s60, s47")
    a("s_lshl_b32 s46, s47, 2")
    a("s_add_u32 s61, s60, s46")
    a("s_add_u32 s62, s61, s46")
    a("s_add_u32 s63, s62, s46")
    a("s_lshl_b32 s46, s47, 6")
    a("s_lshl_b32 s55, s19, 12")
    a("v_lshrrev_b32 v7, 3, v1")
    a("v_and_b32 v8, 7, v1")
    a("v_lshrrev_b32 v9, 1, v7")
    a("v_xor_b32 v8, v8, v9")
    a("v_mul_lo_u32 v7, v7, s44")
    a(f"v_lshl_add_u32 v{VXE}, v8, 4, v7")
    a("v_xor_b32 v8, 4, v8")
    a(f"v_lshl_add_u32 v{VXO}, v8, 4, v7")
    a("v_lshrrev_b32 v7, 4, v1")
    a("v_and_b32 v8, 15, v1")
    a("v_lshlrev_b32 v9, 2, v7")
    a("v_xor_b32 v8, v8, v9")
    a("v_mul_lo_u32 v7, v7, s47")
    a(f"v_lshl_add_u32 v{VW}, v8, 4, v7")
    a("v_cmp_gt_u32 vcc, 14, v8")
    a(f"v_mov_b32 v9, {OOB}")
    a("s_and_b32 s64, s2, 7")
    a(f"v_cndmask_b32 v{VW}, v9, v{VW}, vcc")
    a("s_lshr_b32 s65, s2, 3")
    a("s_lshl_b32 s64, s64, 1")
    a("s_and_b32 s66, s65, 1")
    a("s_or_b32 s64, s64, s66")
    a("s_lshr_b32 s65, s65, 1")
    a("s_lshl_b32 s66, s64, 7")
    a("s_lshl_b32 s67, s65, 1")
    a("s_add_u32 s66, s66, s67")
    a("s_mul_i32 s50, s66, 450")
    a("s_add_u32 s51, s50, 14400")
    a("s_add_u32 s52, s50, 28800")
    a("s_add_u32 s53, s50, 43200")
    a("v_lshlrev_b32 v10, 1, v0")
    a("v_cmp_gt_u32 vcc, 225, v0")
    a("v_lshlrev_b32 v11, 14, v0")
    a("s_lshr_b32 s66, s64, 1")
    a("v_cndmask_b32 v10, v9, v10, vcc")
    a("v_cndmask_b32 v11, v9, v11, vcc")
    a("s_lshl_b32 s66, s66, 11")
    a("s_and_b32 s67, s64, 1")
    a("s_lshl_b32 s67, s67, 9")
    a("s_add_u32 s66, s66, s67")
    a("s_lshl_b32 s67, s65, 5")
    a("s_add_u32 s66, s66, s67")
    a(f"s_add_u32 s64, s66, {WT}")
    a("s_waitcnt lgkmcnt(0)")
    st.stamp()
    a("s_cmp_eq_u32 s16, 3")
    a("s_cselect_b32 s48, s8, s4")
    a("s_cselect_b32 s49, s9, s5")
    srd(a, 20, "s48", "s49", S*D*2)
    a("s_mul_i32 s66, s16, 896")
    a("s_mul_i32 s67, s18, 224")
    a("s_add_u32 s66, s66, s67")
    a("s_cmp_eq_u32 s16, 3")
    a("s_cselect_b32 s66, s67, s66")
    a("s_cselect_b32 s48, s42, s6")
    a("s_cselect_b32 s49, s43, s7")
    a(f"s_mov_b32 s67, {448*2688}")
    a(f"s_cselect_b32 s67, {448*896}, s67")
    a("s_add_u32 s48, s48, s66")
    a("s_addc_u32 s49, s49, 0")
    a("s_sub_u32 s67, s67, s66")
    srd(a, 24, "s48", "s49", "s67")

    def dma_chunk(c):
        so = (c % 5) * 32768
        for u in range(4):
            a(f"s_add_u32 m0, s55, {so + u*1024}")
            a("s_nop 0" if u == 0 else f"s_add_u32 s{56+u-1}, s{56+u-1}, 128")
            a(f"buffer_load_dwordx4 v{VXE if u % 2 == 0 else VXO}, s[20:23], s{56+u} offen lds")
        for u in range(4):
            a(f"s_add_u32 m0, s55, {so + 16384 + u*1024}")
            a("s_add_u32 s59, s59, 128" if u == 0 else f"s_add_u32 s{60+u-1}, s{60+u-1}, s46")
            a(f"buffer_load_dwordx4 v{VW}, s[24:27], s{60+u} offen lds")
        a("s_add_u32 s63, s63, s46")
    dma_chunk(0)
    srd(a, 32, "s12", "s13", S*225*2)
    srd(a, 36, "s14", "s15", S*225*2)
    so = ["s50", "s51", "s52", "s53"]
    for part in range(2):
        for aa in range(2):
            for b in range(4):
                rr = WTR + (part*2+aa)*4 + b
                a(f"buffer_load_ushort v{rr}, v10, s[{32+4*part}:{35+4*part}], {so[b]} offen offset:{450*aa}")
    for c in range(1, 5):
        dma_chunk(c)
    st.stamp()
    srd(a, 28, "s10", "s11", WS_USED)
    a("s_lshr_b32 s68, s19, 1")
    a("s_and_b32 s69, s19, 1")
    a("v_lshrrev_b32 v7, 1, v2")
    a("v_and_b32 v7, 7, v7")
    a("s_lshl_b32 s70, s68, 13")
    a("v_lshlrev_b32 v8, 7, v2")
    a("v_add_u32 v8, s70, v8")
    for k in range(4):
        a(f"v_add_u32 v9, {2*k}, v3")
        a("v_xor_b32 v9, v9, v7")
        a(f"v_lshl_add_u32 v{XB+k}, v9, 4, v8")
        a(f"v_add_u32 v{XB+4+k}, 0x10000, v{XB+k}")
        a(f"v_add_u32 v{XB+8+k}, 0x20000, v{XB+k}")
    a("v_and_b32 v7, 15, v1")
    a("v_lshrrev_b32 v7, 2, v7")
    a("v_and_b32 v8, 3, v1")
    a("v_bfe_u32 v9, v1, 4, 1")
    a("v_lshlrev_b32 v9, 5, v9")
    a("v_lshl_add_u32 v8, v8, 3, v9")
    a("s_mul_i32 s70, s69, 112")
    a("v_add_u32 v8, s70, v8")
    a("v_lshl_add_u32 v9, v3, 3, v7")
    a("v_lshlrev_b32 v9, 8, v9")
    a("v_lshlrev_b32 v7, 2, v7")
    for g in range(2):
        a(f"v_add_u32 v12, {56*g}, v8")
        a("v_lshrrev_b32 v13, 4, v12")
        a("v_xor_b32 v13, v13, v7")
        a("v_and_b32 v12, 15, v12")
        a("v_lshl_add_u32 v13, v13, 4, v12")
        a(f"v_add_u32 v{WB+g}, v13, v9")
        a(f"v_add_u32 v{WB+2+g}, 0x10000, v{WB+g}")
        a(f"v_add_u32 v{WB+4+g}, 0x20000, v{WB+g}")
    for r in range(64):
        a(f"v_mov_b32 v{ACC+r}, 0")
    a(f"v_mov_b32 v14, {f2u(2.0/(2048*448)):#x}")
    a(f"v_mov_b32 v15, {f2u(1.0/(2048*448)):#x}")
    a("v_cmp_eq_u32 vcc, 0, v0")
    a("s_movk_i32 s70, 0xe0")
    a("v_cmp_eq_u32 s[66:67], s70, v0")
    a("s_nop 1")
    a("s_or_b64 vcc, vcc, s[66:67]")
    a("v_cndmask_b32 v14, v14, v15, vcc")

    def reads(t):
        c, k = t // 4, t % 4
        slot = c % 5
        st_ = slot >> 1; so = (slot & 1) * 32768
        b = t % 2
        for tbi in range(2):
            a(f"ds_read_b128 {vr(XA+8*b+4*tbi,4)}, v{XB+4*st_+k} offset:{so+tbi*4096}")
        for g in range(2):
            o = so + 16384 + k*4096
            a(f"ds_read_b64_tr_b16 {vr(WA+8*b+4*g,2)}, v{WB+2*st_+g} offset:{o}")
            a(f"ds_read_b64_tr_b16 {vr(WA+8*b+4*g+2,2)}, v{WB+2*st_+g} offset:{o+1024}")

    def wt_out():
        for r in range(16):
            a(f"v_lshlrev_b32 v{WTR+r}, 16, v{WTR+r}")
        for r in range(0, 16, 2):
            a(f"v_pk_mul_f32 {vr(WTR+r,2)}, {vr(WTR+r,2)}, v[14:15] op_sel_hi:[1,0]")
        for part in range(2):
            for aa in range(2):
                a(f"buffer_store_dwordx4 {vr(WTR+(part*2+aa)*4,4)}, v11, s[28:31], s64 offen offset:{part*1024+aa*16}")

    VM = {0: 48, 1: 28, 2: 20, 3: 20, 4: 20, 5: 8, 6: 0}
    def chunk_wait(c):
        if c == 1:
            a("s_waitcnt vmcnt(32)")
            wt_out()
        a(f"s_waitcnt vmcnt({VM[c]})")
        a("s_barrier")
        if c in (0, 3, 6): st.stamp()
        if c == 2: dma_chunk(5)
        if c == 3: dma_chunk(6)

    def mainloop(order):
        chunk_wait(0)
        reads(0)
        for t in range(28):
            if t + 1 < 28:
                if (t + 1) % 4 == 0:
                    chunk_wait((t + 1) // 4)
                reads(t + 1)
                a("s_waitcnt lgkmcnt(6)")
            else:
                a("s_waitcnt lgkmcnt(0)")
            b = t % 2
            for tbi in range(2):
                for g in range(2):
                    x = vr(XA+8*b+4*tbi, 4); w = vr(WA+8*b+4*g, 4); d = vr(ACC+16*(2*tbi+g), 16)
                    if order == "WX":
                        a(f"v_mfma_f32_32x32x16_bf16 {d}, {w}, {x}, {d}")
                    else:
                        a(f"v_mfma_f32_32x32x16_bf16 {d}, {x}, {w}, {d}")
        st.stamp()

    a("s_lshl_b32 s71, s17, 2")
    a("s_lshl_b32 s72, s68, 1")
    a("s_add_u32 s71, s71, s72")
    a("s_lshl_b32 s72, s18, 2")
    a("s_lshl_b32 s73, s69, 1")
    a("s_add_u32 s72, s72, s73")
    n_save = st.n
    a("s_cmp_ge_u32 s16, 2")
    a("s_cbranch_scc1 k1_vb")
    mainloop("WX")
    a("s_mov_b32 s66, 0")
    a("s_mov_b32 s67, -1")
    a(f"s_mov_b32 s68, {f2u(CQ):#x}")
    a("s_cmp_eq_u32 s16, 0")
    a("s_cselect_b32 s68, s68, 1.0")
    a("s_mov_b32 s69, s68")
    a("s_cmp_eq_u32 s16, 1")
    a("s_cselect_b64 s[44:45], s[66:67], 0")
    a("s_lshl_b32 s70, s72, 6")
    a("s_add_u32 s70, s70, s71")
    a("s_lshl_b32 s70, s70, 11")
    a("s_lshl_b32 s73, s16, 21")
    a("s_add_u32 s70, s70, s73")
    a("v_lshlrev_b32 v4, 4, v1")
    a("v_mov_b32 v5, 1.0")
    a("s_nop 2")
    for tbi in range(2):
        for g in range(2):
            ti = 2*tbi + g
            d = ACC + 16*ti
            for r in range(0, 16, 2):
                a(f"v_pk_mul_f32 {vr(d+r,2)}, {vr(d+r,2)}, s[68:69]")
            for r in range(12, 16):
                a(f"v_cndmask_b32 v{d+r}, v{d+r}, 0, s[66:67]")
            n = 100 + 2*ti + 12
            a(f"v_pk_mul_f32 {vr(n,2)}, {vr(d,2)}, {vr(d,2)}")
            for r in range(2, 16, 2):
                a(f"v_pk_fma_f32 {vr(n,2)}, {vr(d+r,2)}, {vr(d+r,2)}, {vr(n,2)}")
            a(f"v_cndmask_b32 v{d+12}, v{d+12}, v5, s[44:45]")
            a(f"v_add_f32 v{n}, v{n}, v{n+1}")
            for q in range(8):
                a(f"v_cvt_pk_bf16_f32 v{P+8*ti+q}, v{d+2*q}, v{d+2*q+1}")
            off = g*131072 + tbi*2048
            a(f"s_add_u32 s73, s70, {off}")
            a(f"buffer_store_dwordx4 {vr(P+8*ti,4)}, v4, s[28:31], s73 offen")
            a(f"buffer_store_dwordx4 {vr(P+8*ti+4,4)}, v4, s[28:31], s73 offen offset:1024")
    N0 = 112
    for ti in range(4):
        a(f"v_mov_b32 v{N0+2*ti+1}, v{N0+2*ti}")
    a("s_nop 0")
    for ti in range(4):
        a(f"v_permlane32_swap_b32 v{N0+2*ti}, v{N0+2*ti+1}")
    for ti in range(4):
        a(f"v_add_f32 v{N0+2*ti}, v{N0+2*ti}, v{N0+2*ti+1}")
    for sh in (1, 2, 4, 8):
        for ti in range(4):
            a(f"v_max_f32_dpp v{N0+2*ti}, v{N0+2*ti}, v{N0+2*ti} row_shr:{sh} row_mask:0xf bank_mask:0xf")
    for ti in range(4):
        a(f"v_readlane_b32 s{56+2*ti}, v{N0+2*ti}, 15")
        a(f"v_readlane_b32 s{57+2*ti}, v{N0+2*ti}, 31")
    a("s_nop 1")
    for ti in range(4):
        a(f"s_max_u32 s{56+2*ti}, s{56+2*ti}, s{57+2*ti}")
    for ti in range(4):
        a(f"v_writelane_b32 v110, s{56+2*ti}, {ti}")
    a("s_lshl_b32 s70, s16, 4")
    a("s_add_u32 s70, s70, s72")
    a("s_lshl_b32 s70, s70, 8")
    a("s_lshl_b32 s73, s71, 2")
    a("s_add_u32 s70, s70, s73")
    a(f"s_add_u32 s70, s70, {NRM}")
    a("v_and_b32 v4, 1, v1")
    a("v_lshlrev_b32 v4, 8, v4")
    a("v_lshrrev_b32 v6, 1, v1")
    a("v_lshl_add_u32 v4, v6, 2, v4")
    a(f"v_mov_b32 v5, {OOB}")
    a("v_cmp_gt_u32 vcc, 4, v1")
    a("s_nop 1")
    a("v_cndmask_b32 v4, v5, v4, vcc")
    a("buffer_store_dword v110, v4, s[28:31], s70 offen")
    a("s_branch k1_fin")
    a.label("k1_vb")
    st.n = n_save
    mainloop("XW")
    a("s_cmp_eq_u32 s16, 3")
    a("s_cbranch_scc1 k1_b1")
    a("v_mov_b32 v5, 0x3f803f80")
    a("v_cmp_eq_u32 vcc, 28, v2")
    a("v_mov_b32 v6, 0")
    a("v_cmp_lt_u32 s[44:45], 27, v2")
    a("s_lshl_b32 s70, s72, 6")
    a("v_cndmask_b32 v6, v6, v5, vcc")
    a("s_add_u32 s70, s70, s71")
    a("s_lshl_b32 s70, s70, 11")
    a(f"s_add_u32 s70, s70, {VF}")
    a("v_lshlrev_b32 v4, 4, v1")
    a("s_nop 3")
    for tbi in range(2):
        for g in range(2):
            ti = 2*tbi + g
            d = ACC + 16*ti
            for q in range(8):
                a(f"v_cvt_pk_bf16_f32 v{P+8*ti+q}, v{d+2*q}, v{d+2*q+1}")
            for q in range(8):
                a(f"v_cndmask_b32 v{P+8*ti+q}, v{P+8*ti+q}, v6, s[44:45]")
            off = g*131072 + tbi*2048
            a(f"s_add_u32 s73, s70, {off}")
            a(f"buffer_store_dwordx4 {vr(P+8*ti,4)}, v4, s[28:31], s73 offen")
            a(f"buffer_store_dwordx4 {vr(P+8*ti+4,4)}, v4, s[28:31], s73 offen offset:1024")
    a("s_branch k1_fin")
    a.label("k1_b1")
    a("v_lshlrev_b32 v4, 12, v2")
    a("v_lshl_add_u32 v4, v3, 4, v4")
    a(f"v_mov_b32 v5, {OOB}")
    a("v_cmp_gt_u32 vcc, 28, v2")
    a("s_mul_i32 s70, s72, 28*4096")
    a("s_lshl_b32 s73, s71, 6")
    a("v_cndmask_b32 v4, v5, v4, vcc")
    a("s_add_u32 s70, s70, s73")
    a(f"s_add_u32 s70, s70, {ZF}")
    a("s_nop 3")
    for tbi in range(2):
        for g in range(2):
            ti = 2*tbi + g
            d = ACC + 16*ti
            for q in range(8):
                a(f"v_cvt_pk_bf16_f32 v{P+8*ti+q}, v{d+2*q}, v{d+2*q+1}")
            off = g*28*4096 + tbi*64
            a(f"s_add_u32 s73, s70, {off}")
            a(f"buffer_store_dwordx4 {vr(P+8*ti,4)}, v4, s[28:31], s73 offen")
            a(f"buffer_store_dwordx4 {vr(P+8*ti+4,4)}, v4, s[28:31], s73 offen offset:32")
    a.label("k1_fin")
    st.stamp()
    st.finish()
    a.label("k1_end")
    a("s_endpgm")

def desc(name, vgpr, sgpr=102):
    return f""".section .rodata,"a"
.p2align 6
.amdhsa_kernel {name}
  .amdhsa_next_free_vgpr {vgpr}
  .amdhsa_next_free_sgpr {sgpr}
  .amdhsa_accum_offset {(vgpr+3)//4*4}
  .amdhsa_group_segment_fixed_size 0
  .amdhsa_kernarg_size 72
  .amdhsa_user_sgpr_count 2
  .amdhsa_user_sgpr_kernarg_segment_ptr 1
  .amdhsa_system_sgpr_workgroup_id_x 1
  .amdhsa_float_denorm_mode_32 3
.end_amdhsa_kernel
"""
```

```python
from asmlib import *
from common import *
import stamps
from k1 import srd

B2BASE = 65536
TB2_F32 = 0; TB2_F64 = 6144; TB2_TW1 = 30720; TB2_TW2 = 47104; TB2_SIZE = 63488
LDS_W = B2BASE + TB2_SIZE
LDS_MX = LDS_W + 16384
K2_LDS = LDS_MX + 4096
NB0 = [17, 17, 17, 13]
NB1 = [17, 17, 17, 13]
BMAX = 48.0

Q0 = 8; Q1 = 16; KB_ = [24, 32]; VB_ = [40, 48]; S0 = 64; S1 = 80; P0 = 96; P1 = 104; O0 = 112; O1 = 128

def mf(d, a_, b_, c):
    return f"v_mfma_f32_32x32x16_bf16 {d}, {a_}, {b_}, {c}"

def expcvt(a, S, P, grp):
    r = S + 4*grp
    for k in range(4):
        a(f"v_exp_f32 v{r+k}, v{r+k}")
    a(f"v_cvt_pk_bf16_f32 v{P+2*grp}, v{r}, v{r+1}")
    a(f"v_cvt_pk_bf16_f32 v{P+2*grp+1}, v{r+2}, v{r+3}")

def block(a, par):
    Kc, Kn = KB_[par], KB_[1-par]
    Vc, Vp = VB_[par], VB_[1-par]
    s0 = vr(S0, 16); s1 = vr(S1, 16); o0 = vr(O0, 16); o1 = vr(O1, 16)
    a(mf(s1, vr(Kc, 4), vr(Q1, 4), "0"))
    expcvt(a, S0, P0, 0)
    a(mf(s1, vr(Kc+4, 4), vr(Q1+4, 4), s1))
    expcvt(a, S0, P0, 1)
    a(f"buffer_load_dwordx4 {vr(Kc,4)}, v2, s[4:7], s18 offen")
    a(f"buffer_load_dwordx4 {vr(Kc+4,4)}, v2, s[4:7], s18 offen offset:1024")
    a(mf(o1, vr(Vp, 4), vr(P1, 4), o1))
    expcvt(a, S0, P0, 2)
    a(mf(o1, vr(Vp+4, 4), vr(P1+4, 4), o1))
    a(f"buffer_load_dwordx4 {vr(Vp,4)}, v2, s[4:7], s19 offen")
    a(f"buffer_load_dwordx4 {vr(Vp+4,4)}, v2, s[4:7], s19 offen offset:1024")
    expcvt(a, S0, P0, 3)
    a("s_waitcnt vmcnt(6)")
    a(mf(s0, vr(Kn, 4), vr(Q0, 4), "0"))
    expcvt(a, S1, P1, 0)
    a(mf(s0, vr(Kn+4, 4), vr(Q0+4, 4), s0))
    a("s_add_u32 s18, s18, 2048")
    a("s_add_u32 s19, s19, 2048")
    expcvt(a, S1, P1, 1)
    a("s_waitcnt vmcnt(4)")
    a(mf(o0, vr(Vc, 4), vr(P0, 4), o0))
    expcvt(a, S1, P1, 2)
    a(mf(o0, vr(Vc+4, 4), vr(P0+4, 4), o0))
    a("s_sub_u32 s17, s17, 1")
    expcvt(a, S1, P1, 3)

def cmul_stage(a, Cre, Cim, Dre, Dim, vbase, off0, T, lgkm_pre=0):
    for q in range(4):
        a(f"ds_read_b128 {vr(T+8*q,4)}, v{vbase} offset:{off0+(2*q)*1024}")
        a(f"ds_read_b128 {vr(T+8*q+4,4)}, v{vbase} offset:{off0+(2*q+1)*1024}")
    t = T + 32
    for q in range(4):
        a(f"s_waitcnt lgkmcnt({2*(3-q)})")
        for h in range(2):
            re = vr(Cre+4*q+2*h, 2); im = vr(Cim+4*q+2*h, 2)
            c = vr(T+8*q+2*h, 2); s = vr(T+8*q+4+2*h, 2)
            t1 = vr(t+4*h, 2); t2 = vr(t+4*h+2, 2)
            a(f"v_pk_mul_f32 {t1}, {re}, {c}")
            a(f"v_pk_mul_f32 {t2}, {re}, {s}")
        for h in range(2):
            re = vr(Cre+4*q+2*h, 2); im = vr(Cim+4*q+2*h, 2)
            c = vr(T+8*q+2*h, 2); s = vr(T+8*q+4+2*h, 2)
            t1 = vr(t+4*h, 2); t2 = vr(t+4*h+2, 2)
            a(f"v_pk_fma_f32 {t1}, {im}, {s}, {t1} neg_lo:[1,0,0] neg_hi:[1,0,0]")
            a(f"v_pk_fma_f32 {t2}, {im}, {c}, {t2}")
        for h in range(2):
            a(f"v_cvt_pk_bf16_f32 v{Dre+2*q+h}, v{t+4*h}, v{t+4*h+1}")
            a(f"v_cvt_pk_bf16_f32 v{Dim+2*q+h}, v{t+4*h+2}, v{t+4*h+3}")

def gen_b2(a):
    ZR = 8; ZI = 24
    CRE = [64, 80]; CIM = [96, 112]
    DRE = 128; DIM = 144
    CF = 160
    T = 208
    VB0 = 4; VB1 = 5; VZ = 6; VZI = 7
    NOP = "s_nop 7\ns_nop 3"
    a.c("---- B2: FFT - filter - IFFT of column s2 ----")
    a("s_setprio 2")
    a("s_lshl_b32 s20, s2, 1")
    a("s_cmp_eq_u32 s2, 224")
    a("s_cselect_b32 s20, 1, s20")
    a("s_lshl_b32 s21, s2, 1")
    a("s_add_u32 s21, s21, 1")
    a("s_lshl_b32 s20, s20, 12")
    a("s_lshl_b32 s21, s21, 12")
    a("s_cmp_eq_u32 s2, 224")
    a("s_cselect_b32 s21, 0x40000000, s21")
    a("s_cmp_eq_u32 s2, 0")
    a("s_cselect_b32 s21, 0x40000000, s21")
    a("v_and_b32 v3, 31, v1")
    a(f"v_lshrrev_b32 v{VZ}, 5, v1")
    a(f"v_lshlrev_b32 v{VZ}, 4, v{VZ}")
    a(f"v_lshl_add_u32 v{VZ}, v3, 6, v{VZ}")
    a(f"s_add_u32 s22, s20, {ZF}")
    a(f"s_add_u32 s23, s21, {ZF}")
    for mt in range(2):
        for ks in range(2):
            a(f"buffer_load_dwordx4 {vr(ZR+4*(2*mt+ks),4)}, v{VZ}, s[4:7], s22 offen offset:{mt*2048+ks*32}")
    for mt in range(2):
        for ks in range(2):
            a(f"buffer_load_dwordx4 {vr(ZI+4*(2*mt+ks),4)}, v{VZ}, s[4:7], s23 offen offset:{mt*2048+ks*32}")
    def dma(srd_, goff_sreg_init, ldsoff, n):
        a(f"s_mov_b32 s24, {goff_sreg_init}")
        a(f"s_mov_b32 m0, {ldsoff}")
        for k in range(n):
            if k and k % 4 == 0:
                a("s_add_u32 s24, s24, 4096")
                a("s_add_u32 m0, m0, 4096")
            if k % 4 == 0:
                a("s_nop 0")
            a(f"buffer_load_dwordx4 v2, {srd_}, s24 offen offset:{(k%4)*1024} lds")
    dma("s[8:11]", TB2_F32, B2BASE + TB2_F32, 6)
    dma("s[8:11]", TB2_TW1, B2BASE + TB2_TW1, 16)
    dma("s[8:11]", TB2_F64, B2BASE + TB2_F64, 24)
    a(f"v_add_u32 v{VB0}, {B2BASE}, v2")
    a(f"v_add_u32 v{VB1}, {LDS_W}, v2")
    a("s_waitcnt vmcnt(40)")
    a("s_lshl_b32 s25, s2, 14")
    a(f"s_add_u32 s25, s25, {WT}")
    dma("s[4:7]", "s25", LDS_W, 16)
    for f in range(6):
        a(f"ds_read_b128 {vr(CF+4*f,4)}, v{VB0} offset:{TB2_F32+f*1024}")
    a("s_waitcnt lgkmcnt(0)")
    Fr = [vr(CF, 4), vr(CF+4, 4)]; Fi = [vr(CF+8, 4), vr(CF+12, 4)]; nFi = [vr(CF+16, 4), vr(CF+20, 4)]
    for mt in range(2):
        cre = vr(CRE[mt], 16); cim = vr(CIM[mt], 16)
        zr = [vr(ZR+4*(2*mt+ks), 4) for ks in range(2)]; zi = [vr(ZI+4*(2*mt+ks), 4) for ks in range(2)]
        a(mf(cre, zr[0], Fr[0], "0")); a(mf(cim, zr[0], Fi[0], "0"))
        a(mf(cre, zr[1], Fr[1], cre)); a(mf(cim, zr[1], Fi[1], cim))
        a(mf(cre, zi[0], nFi[0], cre)); a(mf(cim, zi[0], Fr[0], cim))
        a(mf(cre, zi[1], nFi[1], cre)); a(mf(cim, zi[1], Fr[1], cim))
    a("s_waitcnt vmcnt(40)")
    a(NOP)
    for mt in range(2):
        cmul_stage(a, CRE[mt], CIM[mt], DRE+8*mt, DIM+8*mt, VB0, TB2_TW1 + mt*8192, T)
    dma("s[8:11]", TB2_TW2, B2BASE + TB2_TW2, 16)
    a("s_waitcnt vmcnt(32)")
    def big_step(data_is_A, conj):
        seq = [(lt, kap) for lt in range(2) for kap in range(4)]
        def rd(idx):
            lt, kap = seq[idx]
            buf = CF + 12*(idx % 4)
            for v in range(3):
                a(f"ds_read_b128 {vr(buf+4*v,4)}, v{VB0} offset:{TB2_F64+((lt*4+kap)*3+v)*1024}")
        rd(0); rd(1); rd(2)
        for idx, (lt, kap) in enumerate(seq):
            rem = min(len(seq)-1-idx, 2)
            a(f"s_waitcnt lgkmcnt({3*rem})")
            buf = CF + 12*(idx % 4)
            fr, fi, nfi = vr(buf, 4), vr(buf+4, 4), vr(buf+8, 4)
            dre = vr(DRE+4*kap, 4); dim = vr(DIM+4*kap, 4)
            cre = vr(CRE[lt], 16); cim = vr(CIM[lt], 16)
            c0 = "0" if kap == 0 else None
            x1, x2 = (fi, nfi) if conj else (nfi, fi)
            def m(d, k, x, c):
                return mf(d, x, k, c) if data_is_A else mf(d, k, x, c)
            a(m(cre, fr, dre, c0 or cre))
            a(m(cim, x2, dre, c0 or cim))
            a(m(cre, x1, dim, cre))
            a(m(cim, fr, dim, cim))
            if idx + 3 < len(seq):
                rd(idx + 3)
    big_step(False, False)
    a("s_waitcnt vmcnt(16)")
    a(NOP)
    for mt in range(2):
        cmul_stage(a, CRE[mt], CIM[mt], DRE+8*mt, DIM+8*mt, VB1, mt*8192, T)
    a("s_nop 1")
    big_step(True, True)
    a("s_waitcnt vmcnt(0)")
    for f in range(6):
        a(f"ds_read_b128 {vr(CF+4*f,4)}, v{VB0} offset:{TB2_F32+f*1024}")
    a(NOP)
    for nt in range(2):
        cmul_stage(a, CRE[nt], CIM[nt], DRE+8*nt, DIM+8*nt, VB0, TB2_TW2 + nt*8192, T)
    a("s_nop 1")
    for nt in range(2):
        cre = vr(CRE[nt], 16); cim = vr(CIM[nt], 16)
        dr = [vr(DRE+8*nt+4*ks, 4) for ks in range(2)]; di = [vr(DIM+8*nt+4*ks, 4) for ks in range(2)]
        a(mf(cre, dr[0], Fr[0], "0")); a(mf(cim, dr[0], nFi[0], "0"))
        a(mf(cre, dr[1], Fr[1], cre)); a(mf(cim, dr[1], nFi[1], cim))
        a(mf(cre, di[0], Fi[0], cre)); a(mf(cim, di[0], Fr[0], cim))
        a(mf(cre, di[1], Fi[1], cre)); a(mf(cim, di[1], Fr[1], cim))
    a("v_and_b32 v3, 31, v1")
    a(f"v_lshrrev_b32 v{VZ}, 5, v1")
    a(f"v_lshlrev_b32 v{VZ}, 4, v{VZ}")
    a(f"v_lshl_add_u32 v{VZ}, v3, 7, v{VZ}")
    a(f"s_add_u32 s22, s20, {ZT}")
    a(f"s_add_u32 s23, s21, {ZT}")
    a(NOP)
    for part, (C, so) in enumerate(((CRE, "s22"), (CIM, "s23"))):
        for nt in range(2):
            Pk = DRE + 16*part + 8*nt
            for q in range(8):
                a(f"v_cvt_pk_bf16_f32 v{Pk+q}, v{C[nt]+2*q}, v{C[nt]+2*q+1}")
            a("s_nop 1")
            for m in range(2):
                a(f"v_permlane32_swap_b32 v{Pk+4*m}, v{Pk+4*m+2}")
                a(f"v_permlane32_swap_b32 v{Pk+4*m+1}, v{Pk+4*m+3}")
            for m in range(2):
                a(f"buffer_store_dwordx4 {vr(Pk+4*m,4)}, v{VZ}, s[4:7], {so} offen offset:{nt*64+m*32}")
    a("s_setprio 0")

WITH_B2 = True
def gen_k2(a):
    with_b2 = WITH_B2
    a.label("k2_kernel")
    a("s_cmp_ge_u32 s2, 256")
    a("s_cbranch_scc1 k2_end")
    st = stamps.St(a, 1, "s26", "s68", "s69")
    st.start()
    a("s_load_dwordx2 s[12:13], s[0:1], 64")
    a("s_load_dwordx2 s[68:69], s[0:1], 64")
    a("s_getpc_b64 s[14:15]")
    a("s_add_u32 s14, s14, TB2@rel32@lo+4")
    a("s_addc_u32 s15, s15, TB2@rel32@hi+12")
    a("v_lshrrev_b32 v3, 6, v0")
    a("v_and_b32 v1, 63, v0")
    a("v_readfirstlane_b32 s26, v3")
    a("v_lshlrev_b32 v2, 4, v1")
    srd(a, 8, "s14", "s15", TB2_SIZE)
    a("s_waitcnt lgkmcnt(0)")
    srd(a, 4, "s12", "s13", WS_USED)
    st.stamp()
    if with_b2:
        a("s_cmp_lg_u32 s26, 7")
        a("s_cbranch_scc1 k2_attn")
        a("s_cmp_ge_u32 s2, 225")
        a("s_cbranch_scc1 k2_attn")
        gen_b2(a)
    a.label("k2_attn")
    st.stamp()
    a("s_and_b32 s27, s2, 7")
    a("s_lshr_b32 s28, s2, 3")
    a("s_lshl_b32 s15, s27, 1")
    a("s_and_b32 s29, s28, 1")
    a("s_or_b32 s15, s15, s29")
    a("s_lshr_b32 s16, s28, 1")
    a("s_and_b32 s13, s26, 3")
    a("s_lshr_b32 s14, s26, 2")
    a("s_lshl_b32 s30, s15, 8")
    a(f"s_add_u32 s31, s30, {NRM+4096}")
    a("s_lshl_b32 s29, s16, 4")
    a("s_add_u32 s30, s30, s29")
    a(f"s_add_u32 s30, s30, {NRM}")
    a("v_lshlrev_b32 v56, 2, v1")
    a("v_and_b32 v57, 3, v1")
    a("v_lshlrev_b32 v57, 2, v57")
    a("buffer_load_dword v58, v56, s[4:7], s31 offen")
    a("buffer_load_dword v59, v57, s[4:7], s30 offen")
    a("s_lshl_b32 s32, s15, 6")
    a("s_lshl_b32 s33, s16, 2")
    a("s_lshl_b32 s34, s14, 1")
    a("s_add_u32 s33, s33, s34")
    a("s_add_u32 s34, s32, s33")
    a("s_lshl_b32 s34, s34, 11")
    for t in range(2):
        for m in range(2):
            a(f"buffer_load_dwordx4 {vr(Q0+8*t+4*m,4)}, v2, s[4:7], s34 offen offset:{t*2048+m*1024}")
    assert NB0[:3] == [NB0[0]]*3 and NB1[:3] == [NB1[0]]*3
    a(f"s_mov_b32 s35, {NB0[0]}")
    a(f"s_cmp_eq_u32 s14, 1")
    a(f"s_cselect_b32 s35, {NB1[0]}, s35")
    a("s_mul_i32 s36, s35, s13")
    a("s_sub_u32 s17, 64, s36")
    a("s_min_u32 s17, s17, s35")
    a("s_cmp_eq_u32 s13, 3")
    a("s_cbranch_scc0 k2_cnt")
    a("s_sub_u32 s17, 64, s36")
    a.label("k2_cnt")
    a("s_add_u32 s36, s36, s32")
    a("s_lshl_b32 s36, s36, 11")
    a(f"s_add_u32 s18, s36, {KF}")
    a(f"s_add_u32 s19, s36, {VF}")
    a(f"buffer_load_dwordx4 {vr(KB_[0],4)}, v2, s[4:7], s18 offen")
    a(f"buffer_load_dwordx4 {vr(KB_[0]+4,4)}, v2, s[4:7], s18 offen offset:1024")
    a(f"buffer_load_dwordx4 {vr(KB_[1],4)}, v2, s[4:7], s18 offen offset:2048")
    a(f"buffer_load_dwordx4 {vr(KB_[1]+4,4)}, v2, s[4:7], s18 offen offset:3072")
    a(f"buffer_load_dwordx4 {vr(VB_[0],4)}, v2, s[4:7], s19 offen")
    a(f"buffer_load_dwordx4 {vr(VB_[0]+4,4)}, v2, s[4:7], s19 offen offset:1024")
    for r in range(32):
        a(f"v_mov_b32 v{O0+r}, 0")
    for r in range(8):
        a(f"v_mov_b32 v{P1+r}, 0")
        a(f"v_mov_b32 v{VB_[1]+r}, 0")
    a("s_waitcnt vmcnt(10)")
    st.stamp()
    for sh in (1, 2, 4, 8):
        a(f"v_max_u32_dpp v58, v58, v58 row_shr:{sh} row_mask:0xf bank_mask:0xf")
        a(f"v_max_u32_dpp v59, v59, v59 row_shr:{sh} row_mask:0xf bank_mask:0xf")
        a("s_nop 0")
    a("v_max_u32_dpp v58, v58, v58 row_bcast:15 row_mask:0xa bank_mask:0xf")
    a("s_nop 1")
    a("v_max_u32_dpp v58, v58, v58 row_bcast:31 row_mask:0xc bank_mask:0xf")
    a("s_nop 0")
    a("v_readlane_b32 s37, v58, 63")
    a("v_readlane_b32 s38, v59, 15")
    a("s_nop 1")
    a("v_mov_b32 v58, s37")
    a("v_mul_f32 v58, s38, v58")
    a("v_sqrt_f32 v58, v58")
    a(f"v_mov_b32 v59, {f2u(0.25):#x}")
    a(f"v_mov_b32 v60, {f2u(1.02):#x}")
    a("v_fma_f32 v58, v58, v60, v59")
    a("s_nop 0")
    a("v_readfirstlane_b32 s37, v58")
    a("s_nop 1")
    a(f"s_cmp_gt_u32 s37, {f2u(BMAX):#x}")
    a("s_cbranch_scc1 k2_slow")
    a("s_lshr_b32 s37, s37, 16")
    a("s_add_u32 s37, s37, 1")
    a("s_or_b32 s37, s37, 0x8000")
    a("s_waitcnt vmcnt(6)")
    a("s_mov_b32 exec_lo, 0")
    a(f"v_mov_b32 v{Q0+6}, s37")
    a(f"v_mov_b32 v{Q1+6}, s37")
    a("s_mov_b32 exec_lo, -1")
    a("s_add_u32 s18, s18, 4096")
    a("s_add_u32 s19, s19, 2048")
    a("s_waitcnt vmcnt(4)")
    a(mf(vr(S0, 16), vr(KB_[0], 4), vr(Q0, 4), "0"))
    a(mf(vr(S0, 16), vr(KB_[0]+4, 4), vr(Q0+4, 4), vr(S0, 16)))
    a("s_nop 7")
    a("s_nop 2")
    st.stamp()
    a.label("k2_loop")
    l0 = len(a.L)
    block(a, 0)
    a("s_cmp_eq_u32 s17, 0")
    a("s_cbranch_scc1 k2_exit0")
    block(a, 1)
    a("s_cmp_lg_u32 s17, 0")
    a("s_cbranch_scc1 k2_loop")
    loop_lines = a.L[l0:]
    a.loops = getattr(a, "loops", []) + [loop_lines]
    a(mf(vr(O1, 16), vr(VB_[1], 4), vr(P1, 4), vr(O1, 16)))
    a(mf(vr(O1, 16), vr(VB_[1]+4, 4), vr(P1+4, 4), vr(O1, 16)))
    a("s_branch k2_fin")
    a.label("k2_exit0")
    a(mf(vr(O1, 16), vr(VB_[0], 4), vr(P1, 4), vr(O1, 16)))
    a(mf(vr(O1, 16), vr(VB_[0]+4, 4), vr(P1+4, 4), vr(O1, 16)))
    a.label("k2_fin")
    a("s_nop 7")
    a("s_nop 3")
    a.label("k2_red")
    st.stamp()
    a("s_lshl_b32 s37, s26, 13")
    a("v_add_u32 v56, s37, v2")
    for t in range(2):
        for q in range(4):
            a(f"ds_write_b128 v56, {vr(O0+16*t+4*q,4)} offset:{(t*4+q)*1024}")
    a("s_lshr_b32 s38, s13, 1")
    a("s_and_b32 s39, s13, 1")
    a("s_lshl_b32 s40, s14, 15")
    a("s_lshl_b32 s41, s38, 12")
    a("s_add_u32 s40, s40, s41")
    a("s_lshl_b32 s41, s39, 11")
    a("s_add_u32 s41, s41, s40")
    a("v_add_u32 v57, s41, v2")
    a("v_and_b32 v58, 31, v1")
    a("v_lshlrev_b32 v58, 4, v58")
    a("s_add_u32 s40, s40, 3*1024+512")
    a("v_add_u32 v58, s40, v58")
    a("s_waitcnt lgkmcnt(0)")
    a("s_barrier")
    st.stamp()
    R = 64
    for k in range(4):
        a(f"ds_read_b32 v{60+k}, v58 offset:{k*8192}")
    for k in range(4):
        a(f"ds_read_b128 {vr(R+8*k,4)}, v57 offset:{k*8192}")
        a(f"ds_read_b128 {vr(R+8*k+4,4)}, v57 offset:{k*8192+1024}")
    a("s_add_u32 s42, s33, s38")
    a("s_lshl_b32 s42, s42, 4")
    a("s_add_u32 s42, s42, s15")
    a("s_lshl_b32 s42, s42, 1")
    a("s_add_u32 s42, s42, s39")
    a("s_lshl_b32 s42, s42, 10")
    a(f"s_add_u32 s42, s42, {OF}")
    a("s_waitcnt lgkmcnt(8)")
    a("v_add_f32 v60, v60, v61")
    a("v_add_f32 v62, v62, v63")
    a("v_add_f32 v60, v60, v62")
    a("v_rcp_f32 v60, v60")
    a("s_waitcnt lgkmcnt(0)")
    for r in range(8):
        a(f"v_add_f32 v{R+r}, v{R+r}, v{R+8+r}")
        a(f"v_add_f32 v{R+16+r}, v{R+16+r}, v{R+24+r}")
    for r in range(8):
        a(f"v_add_f32 v{R+r}, v{R+r}, v{R+16+r}")
    for r in range(8):
        a(f"v_mul_f32 v{R+r}, v{R+r}, v60")
    for q in range(4):
        a(f"v_cvt_pk_bf16_f32 v{96+q}, v{R+2*q}, v{R+2*q+1}")
    a("s_cmp_eq_u32 s39, 1")
    a("s_cselect_b32 s45, -1, 0")
    a("s_mov_b32 s44, 0")
    a("v_cndmask_b32 v98, v98, 0, s[44:45]")
    a("v_cndmask_b32 v99, v99, 0, s[44:45]")
    a("buffer_store_dwordx4 v[96:99], v2, s[4:7], s42 offen")
    st.finish()
    a.label("k2_end")
    a("s_endpgm")
    a.label("k2_slow")
    M0_, M1_ = 56, 57
    a(f"v_mov_b32 v{M0_}, 0xff7fffff")
    a(f"v_mov_b32 v{M1_}, 0xff7fffff")
    a.label("k2_sloop")
    a(f"buffer_load_dwordx4 {vr(KB_[0],4)}, v2, s[4:7], s18 offen")
    a(f"buffer_load_dwordx4 {vr(KB_[0]+4,4)}, v2, s[4:7], s18 offen offset:1024")
    a(f"buffer_load_dwordx4 {vr(VB_[0],4)}, v2, s[4:7], s19 offen")
    a(f"buffer_load_dwordx4 {vr(VB_[0]+4,4)}, v2, s[4:7], s19 offen offset:1024")
    a("s_waitcnt vmcnt(0)")
    for t, (Q, S_, P_, O_, M_) in enumerate(((Q0, S0, P0, O0, M0_), (Q1, S1, P1, O1, M1_))):
        s = vr(S_, 16); o = vr(O_, 16)
        a(mf(s, vr(KB_[0], 4), vr(Q, 4), "0"))
        a(mf(s, vr(KB_[0]+4, 4), vr(Q+4, 4), s))
        a("s_nop 7\ns_nop 7")
        a(f"v_max3_f32 v58, v{S_}, v{S_+1}, v{S_+2}")
        for r in range(3, 15, 2):
            a(f"v_max3_f32 v58, v58, v{S_+r}, v{S_+r+1}")
        a(f"v_max_f32 v58, v58, v{S_+15}")
        a("v_mov_b32 v59, v58")
        a("s_nop 1")
        a("v_permlane32_swap_b32 v58, v59")
        a("v_max_f32 v58, v58, v59")
        a(f"v_max_f32 v58, v58, v{M_}")
        a(f"v_sub_f32 v59, v{M_}, v58")
        a("v_exp_f32 v59, v59")
        a(f"v_mov_b32 v{M_}, v58")
        for r in range(16):
            a(f"v_mul_f32 v{O_+r}, v{O_+r}, v59")
        for r in range(16):
            a(f"v_sub_f32 v{S_+r}, v{S_+r}, v58")
        for g in range(4):
            expcvt(a, S_, P_, g)
        a("s_nop 1")
        a(mf(o, vr(VB_[0], 4), vr(P_, 4), o))
        a(mf(o, vr(VB_[0]+4, 4), vr(P_+4, 4), o))
    a("s_nop 7\ns_nop 7")
    a("s_add_u32 s18, s18, 2048")
    a("s_add_u32 s19, s19, 2048")
    a("s_sub_u32 s17, s17, 1")
    a("s_cmp_lg_u32 s17, 0")
    a("s_cbranch_scc1 k2_sloop")
    a("s_lshl_b32 s37, s26, 9")
    a(f"s_add_u32 s37, s37, {LDS_MX}")
    a("v_lshlrev_b32 v58, 2, v1")
    a("v_add_u32 v59, s37, v58")
    a(f"ds_write_b32 v59, v{M0_}")
    a(f"ds_write_b32 v59, v{M1_} offset:256")
    a("s_lshl_b32 s37, s14, 11")
    a(f"s_add_u32 s37, s37, {LDS_MX}")
    a("v_add_u32 v59, s37, v58")
    a("s_waitcnt lgkmcnt(0)")
    a("s_barrier")
    for t, (O_, M_) in enumerate(((O0, M0_), (O1, M1_))):
        for k in range(4):
            a(f"ds_read_b32 v{60+k}, v59 offset:{k*512+t*256}")
        a("s_waitcnt lgkmcnt(0)")
        a("v_max3_f32 v60, v60, v61, v62")
        a("v_max_f32 v60, v60, v63")
        a(f"v_sub_f32 v60, v{M_}, v60")
        a("v_exp_f32 v60, v60")
        a("s_nop 0")
        for r in range(16):
            a(f"v_mul_f32 v{O_+r}, v{O_+r}, v60")
    a("s_branch k2_red")
```

```python
from asmlib import *
from common import *
import stamps
from k1 import srd

K3_LDS = 456*128
STAGES_A = [6, 8, 9, 9]
STAGES_B = [6, 8, 7, 7]

def gen_k3(a):
    X0 = 16; ACC = 144; WF = 176
    a.label("k3_kernel")
    a("s_cmp_ge_u32 s2, 256")
    a("s_cbranch_scc1 k3_end")
    st = stamps.St(a, 2, "s19", "s8", "s9")
    st.start()
    a("s_load_dwordx2 s[4:5], s[0:1], 16")
    a("s_load_dwordx2 s[6:7], s[0:1], 48")
    a("s_load_dwordx2 s[8:9], s[0:1], 64")
    a("s_getpc_b64 s[10:11]")
    a("s_add_u32 s10, s10, TF@rel32@lo+4")
    a("s_addc_u32 s11, s11, TF@rel32@hi+12")
    a("s_and_b32 s40, s2, 7")
    a("s_lshr_b32 s41, s2, 3")
    a("s_lshr_b32 s16, s40, 2")
    a("s_and_b32 s17, s40, 3")
    a("v_lshrrev_b32 v4, 6, v0")
    a("v_and_b32 v1, 63, v0")
    a("v_readfirstlane_b32 s19, v4")
    a("v_and_b32 v2, 31, v1")
    a("v_lshrrev_b32 v3, 5, v1")
    a("v_lshrrev_b32 v6, 3, v1")
    a("v_and_b32 v7, 7, v1")
    a("v_bfe_u32 v8, v1, 4, 1")
    a("v_lshlrev_b32 v8, 2, v8")
    a("v_xor_b32 v7, v7, v8")
    a("v_and_b32 v9, 15, v1")
    a("v_lshrrev_b32 v9, 2, v9")
    a("v_and_b32 v10, 3, v1")
    a("v_bfe_u32 v11, v1, 4, 1")
    a("v_lshlrev_b32 v11, 5, v11")
    a("v_lshl_add_u32 v10, v10, 3, v11")
    a("v_bfe_u32 v11, v9, 1, 1")
    a("v_lshlrev_b32 v11, 2, v11")
    a("s_waitcnt lgkmcnt(0)")
    st.stamp()
    srd(a, 28, "s8", "s9", WS_USED)
    srd(a, 32, "s6", "s7", S*896*2)
    n_save = st.n
    a("s_cmp_eq_u32 s16, 1")
    a("s_cbranch_scc1 k3_b3")

    def trbases(gstride, rowpart_code):
        rowpart_code()
        for g in range(2):
            a(f"v_add_u32 v13, {gstride*g}, v10")
            a("v_lshrrev_b32 v5, 4, v13")
            a("v_xor_b32 v5, v5, v11")
            a("v_and_b32 v13, 15, v13")
            a("v_lshl_add_u32 v5, v5, 4, v13")
            a(f"v_add_u32 v{14+g}, v5, v12")

    def mainloop(nks, stages, ndma_per_wave, dma_of_stage, roff, order, extra_first):
        bounds = []; acc = 0
        for n in stages:
            acc += n; bounds.append(acc)
        assert acc == nks
        def stage_of(ks):
            for si, b in enumerate(bounds):
                if ks < b: return si
        def stage_wait(si):
            a(f"s_waitcnt vmcnt({issue_rem[si]})")
            a("s_barrier")
            if si in (0, 2, 3): st.stamp()
        def trread(ks, g, buf):
            o1, o2 = roff(ks)
            a(f"ds_read_b64_tr_b16 {vr(buf,2)}, v{14+g} offset:{o1}")
            a(f"ds_read_b64_tr_b16 {vr(buf+2,2)}, v{14+g} offset:{o2}")
        issue_rem = dma_of_stage
        seq = [(ks, g) for ks in range(nks) for g in range(2)]
        DEPTH = 4
        def buf(idx): return WF + 4*(idx % DEPTH)
        cur_stage = 0
        stage_wait(0)
        issued = 0
        def try_issue(upto):
            nonlocal issued, cur_stage
            while issued < min(upto, len(seq)):
                ks, g = seq[issued]
                if stage_of(ks) != cur_stage:
                    cur_stage = stage_of(ks)
                    stage_wait(cur_stage)
                trread(ks, g, buf(issued))
                issued += 1
        try_issue(DEPTH - 1)
        for idx, (ks, g) in enumerate(seq):
            try_issue(idx + DEPTH - 0 if False else idx + DEPTH - 1 + 0)
            out = issued - idx - 1
            a(f"s_waitcnt lgkmcnt({2*out})")
            x = vr(X0+4*ks, 4); w = vr(buf(idx), 4); d = vr(ACC+16*g, 16)
            c = "0" if ks == 0 else d
            if order == "WX":
                a(f"v_mfma_f32_32x32x16_bf16 {d}, {w}, {x}, {c}")
            else:
                a(f"v_mfma_f32_32x32x16_bf16 {d}, {x}, {w}, {c}")
            try_issue(idx + DEPTH)
        st.stamp()
        a("s_nop 7")
        a("s_nop 3")

    def epilogue():
        a("v_mov_b32 v6, 0x40000000")
        a("v_cmp_eq_u32 vcc, 1, v3")
        a("s_nop 1")
        a("v_cndmask_b32 v5, v4, v6, vcc")
        for g in range(2):
            d = ACC + 16*g
            for q in range(8):
                a(f"v_cvt_pk_bf16_f32 v{X0+8*g+q}, v{d+2*q}, v{d+2*q+1}")
            for q in range(4):
                va = "v5" if q == 3 else "v4"
                a(f"buffer_store_dwordx2 {vr(X0+8*g+2*q,2)}, {va}, s[32:35], s45 offen offset:{16*q}")
            if g == 0:
                a("s_add_u32 s45, s45, s44")

    a("s_lshl_b32 s20, s17, 2")
    a("s_and_b32 s21, s41, 3")
    a("s_add_u32 s20, s20, s21")
    a("s_lshr_b32 s21, s41, 2")
    a("s_mul_i32 s22, s21, 112")
    a("s_add_u32 s24, s4, s22")
    a("s_addc_u32 s25, s5, 0")
    a(f"s_sub_u32 s23, {448*896}, s22")
    srd(a, 24, "s24", "s25", "s23")
    a("s_lshl_b32 s22, s20, 2")
    a("s_add_u32 s22, s22, s19")
    a("s_lshl_b32 s46, s22, 15")
    a(f"s_add_u32 s46, s46, {OF}")
    a("v_lshlrev_b32 v4, 4, v1")
    a("s_movk_i32 s47, 896")
    a("v_mul_lo_u32 v5, v6, s47")
    a("v_lshl_add_u32 v5, v7, 4, v5")
    a("v_cmp_gt_u32 vcc, 7, v7")
    a("v_mov_b32 v8, 0x40000000")
    a("s_nop 0")
    a("v_cndmask_b32 v5, v8, v5, vcc")
    a("s_mul_i32 s53, s19, 8*896")
    a("s_lshl_b32 s55, s19, 10")
    a("s_mov_b32 m0, s55")
    a("s_nop 0")
    order = []
    xi = 0; ti = 0
    while xi < 32 or ti < 14:
        if ti < 14 and (ti * 32 <= xi * 14 or xi >= 32):
            order.append(("d", ti)); ti += 1
        else:
            order.append(("x", xi)); xi += 1
    for kind, n in order:
        if kind == "x":
            if n % 4 == 0 and n > 0:
                a("s_add_u32 s46, s46, 4096")
            a(f"buffer_load_dwordx4 {vr(X0+4*n,4)}, v4, s[28:31], s46 offen offset:{(n%4)*1024}")
        else:
            a("buffer_load_dwordx4 v5, s[24:27], s53 offen lds")
            if n < 13:
                a(f"s_add_u32 s53, s53, {32*896}")
                a("s_add_u32 m0, m0, 4096")
    a("v_mov_b32 v8, 0")
    a("v_lshlrev_b32 v12, 2, v0")
    a(f"ds_write_b32 v12, v8 offset:{448*128}")
    bounds = []; acc = 0
    for n in STAGES_A:
        acc += n; bounds.append(acc)
    rem = []
    for b in bounds:
        klast = b - 1
        h, m = klast // 2, klast % 2
        rows = min(448, 28*h + 16*m + 16)
        tneed = (rows + 31) // 32
        pos = max(order.index(("x", klast)), order.index(("d", tneed-1)))
        rem.append(len(order) - 1 - pos)
    def rp_a():
        a("v_lshl_add_u32 v12, v3, 2, v9")
        a("v_lshlrev_b32 v12, 7, v12")
    trbases(56, rp_a)
    a("s_waitcnt lgkmcnt(0)")
    mainloop(32, STAGES_A, 14, rem, lambda k: ((28*(k//2)+16*(k % 2))*128, (28*(k//2)+16*(k % 2)+8)*128), "WX", 0)
    a("s_lshl_b32 s22, s20, 7")
    a("s_lshl_b32 s23, s19, 5")
    a("s_add_u32 s22, s22, s23")
    a("s_mul_i32 s45, s22, 1792")
    a("s_mul_i32 s23, s21, 112")
    a("s_add_u32 s45, s45, s23")
    a("s_movk_i32 s44, 56")
    a("s_movk_i32 s47, 1792")
    a("v_mul_lo_u32 v4, v2, s47")
    a("v_lshl_add_u32 v4, v3, 3, v4")
    epilogue()
    st.finish()
    a("s_endpgm")
    a.label("k3_b3")
    st.n = n_save
    a("s_lshl_b32 s20, s17, 3")
    a("s_and_b32 s21, s41, 7")
    a("s_add_u32 s20, s20, s21")
    a("s_lshr_b32 s21, s41, 3")
    a("s_lshl_b32 s22, s20, 7")
    a(f"s_add_u32 s22, s22, {ZT}")
    a("s_add_u32 s24, s8, s22")
    a("s_addc_u32 s25, s9, 0")
    a(f"s_sub_u32 s23, {WS_USED}, s22")
    srd(a, 24, "s24", "s25", "s23")
    srd(a, 36, "s10", "s11", 448*896)
    a("s_mul_i32 s22, s21, 112")
    a("s_mul_i32 s23, s19, 28")
    a("s_add_u32 s22, s22, s23")
    a("s_mul_i32 s46, s22, 896")
    a("s_movk_i32 s47, 896")
    a("v_mul_lo_u32 v4, v2, s47")
    a("v_lshl_add_u32 v4, v3, 4, v4")
    a("v_cmp_gt_u32 vcc, 28, v2")
    a("v_mov_b32 v8, 0x40000000")
    a("v_lshlrev_b32 v5, 12, v6")
    a("v_cndmask_b32 v4, v8, v4, vcc")
    a("v_lshl_add_u32 v5, v7, 4, v5")
    a("s_lshl_b32 s53, s19, 15")
    a("s_lshl_b32 s55, s19, 10")
    a("s_mov_b32 m0, s55")
    a("s_nop 0")
    order = []
    xi = 0; ti = 0
    while xi < 28 or ti < 14:
        if ti < 14 and (ti * 2 <= xi or xi >= 28):
            order.append(("d", ti)); ti += 1
        else:
            order.append(("x", xi)); xi += 1
    for kind, n in order:
        if kind == "x":
            a(f"buffer_load_dwordx4 {vr(X0+4*n,4)}, v4, s[36:39], s46 offen offset:{32*n}")
        else:
            a("buffer_load_dwordx4 v5, s[24:27], s53 offen lds")
            if n < 13:
                a(f"s_add_u32 s53, s53, {32*4096}")
                a("s_add_u32 m0, m0, 4096")
    bounds = []; acc = 0
    for n in STAGES_B:
        acc += n; bounds.append(acc)
    rem = []
    for b in bounds:
        klast = b - 1
        tneed = (16*b + 31) // 32
        pos = max(order.index(("x", klast)), order.index(("d", tneed-1)))
        rem.append(len(order) - 1 - pos)
    def rp_b():
        a("v_lshl_add_u32 v12, v3, 3, v9")
        a("v_lshlrev_b32 v12, 7, v12")
    trbases(64, rp_b)
    mainloop(28, STAGES_B, 14, rem, lambda k: (16*k*128, (16*k+4)*128), "XW", 0)
    a("s_lshl_b32 s22, s20, 6")
    a("s_mul_i32 s45, s22, 1792")
    a("s_mul_i32 s23, s21, 224")
    a("s_add_u32 s45, s45, s23")
    a("s_mul_i32 s23, s19, 56")
    a("s_add_u32 s45, s45, s23")
    a("s_add_u32 s45, s45, 896")
    a("s_mov_b32 s44, 32*1792")
    a("s_movk_i32 s47, 1792")
    a("v_mul_lo_u32 v4, v2, s47")
    a("v_lshl_add_u32 v4, v3, 3, v4")
    epilogue()
    st.finish()
    a.label("k3_end")
    a("s_endpgm")
```

```python
DBGA = 0x2000000
ENABLED = False
class St:
    def __init__(self, a, kidx, wave_sreg, srd_base_lo, srd_base_hi):
        self.a = a; self.k = kidx; self.n = 0; self.w = wave_sreg; self.lo = srd_base_lo; self.hi = srd_base_hi
    def start(self):
        if not ENABLED: return
        self.a("s_memrealtime s[76:77]")
        self.stamp()
    def stamp(self):
        if not ENABLED: return
        assert self.n < 10
        self.a(f"s_memtime s[{80+2*self.n}:{81+2*self.n}]")
        self.n += 1
    def finish(self, vtmp=(250, 251)):
        if not ENABLED: return
        a = self.a
        a("s_waitcnt vmcnt(0)")
        self.stamp()
        a("s_memrealtime s[78:79]")
        a("s_waitcnt lgkmcnt(0)")
        a(f"s_add_u32 s72, {self.lo}, {DBGA}")
        a(f"s_addc_u32 s73, {self.hi}, 0")
        a("s_and_b32 s73, s73, 0xffff")
        a("s_mov_b32 s74, 0x1000000")
        a("s_mov_b32 s75, 0x20000")
        v0, v1 = vtmp
        a(f"s_add_u32 s70, s2, {self.k*256}")
        a("s_lshl_b32 s70, s70, 3")
        a(f"s_add_u32 s70, s70, {self.w}")
        a("s_lshl_b32 s70, s70, 7")
        a(f"v_mov_b32 v{v0}, 0")
        for i in range(self.n):
            a(f"v_writelane_b32 v{v0}, s{80+2*i}, {i}")
        a(f"v_writelane_b32 v{v0}, s76, 12")
        a(f"v_writelane_b32 v{v0}, s78, 13")
        a(f"s_getreg_b32 s71, hwreg(HW_REG_HW_ID)")
        a(f"v_writelane_b32 v{v0}, s71, 14")
        a(f"s_getreg_b32 s71, hwreg(HW_REG_XCC_ID)")
        a(f"v_writelane_b32 v{v0}, s71, 15")
        a(f"v_mbcnt_lo_u32_b32 v{v1}, -1, 0")
        a(f"v_mbcnt_hi_u32_b32 v{v1}, -1, v{v1}")
        a(f"v_lshlrev_b32 v{v1}, 2, v{v1}")
        a("s_mov_b64 exec, 0xffff")
        a(f"buffer_store_dword v{v0}, v{v1}, s[72:75], s70 offen")
        a("s_waitcnt vmcnt(0)")
```

```python
import sys
from asmlib import *
from common import *
import k1, k2, k3, tables
def stamps_on():
    import stamps
    return stamps.ENABLED
NAME = "concat_heads__softmax_full_mha__spectral_gfnet__prompt"
def build(which=("k1","k2","k3"), order=None):
    hdr = open("cdna_kernels/%s.s.ref" % NAME).read().split("\n")
    head = [l for l in hdr[:12] if l.startswith(";") and "@launch" not in l and "Override" not in l and "grid=ceil" not in l]
    out = head[:]
    launches = []
    if "k1" in which: launches.append("; @launch kernel=k1_kernel grid=(256,1,1) block=(256,1,1) lds=%d" % k1.K1_LDS)
    if "k2" in which: launches.append("; @launch kernel=k2_kernel grid=(256,1,1) block=(512,1,1) lds=%d" % k2.K2_LDS)
    if "k3" in which: launches.append("; @launch kernel=k3_kernel grid=(256,1,1) block=(256,1,1) lds=%d" % k3.K3_LDS)
    if order:
        m = {"k1": launches[0], "k2": launches[1], "k3": launches[2]}
        launches = [m[x] for x in order]
    out += launches
    out.append('.amdgcn_target "amdgcn-amd-amdhsa--gfx950"')
    errs = []
    descs = []
    body = []
    for nm, fn, vg in (("k1", k1.gen_k1, 256 if stamps_on() else 192), ("k2", k2.gen_k2, 256 if stamps_on() else 248), ("k3", k3.gen_k3, 256 if stamps_on() else 192)):
        if nm not in which: continue
        a = Asm()
        fn(a)
        errs += check(a.L, nm)
        for lp in getattr(a, "loops", []):
            errs += check(lp + lp, nm + "-loop")
        body.append(".text\n.globl %s_kernel\n.p2align 8\n.type %s_kernel,@function\n" % (nm, nm) + a.text())
        descs.append(k1.desc(nm + "_kernel", vg))
    txt = "\n".join(out) + "\n" + "\n".join(body) + "\n" + "\n".join(descs) + tables.gen_tables() + tables.gen_tb2()
    return txt, errs
if __name__ == "__main__":
    import stamps
    if len(sys.argv) > 2 and sys.argv[2] == "stamp": stamps.ENABLED = True
    order = None
    for x in sys.argv[3:]:
        if x.startswith("order="): order = x[6:].split(",")
        if x == "nob2":
            k2.WITH_B2 = False; k2.NB0 = [16]*4; k2.NB1 = [16]*4
    txt, errs = build(order=order)
    for e in errs: print("HAZARD", e)
    open(sys.argv[1] if len(sys.argv) > 1 else "out.s", "w").write(txt)
    print("written", len(txt))
```

```python
from asmlib import *
from common import *
import stamps

def srd(a, s, lo, hi, size):
    a(f"s_mov_b32 s{s}, {lo}")
    a(f"s_and_b32 s{s+1}, {hi}, 0xffff")
    a(f"s_mov_b32 s{s+2}, {size}")
    a(f"s_mov_b32 s{s+3}, 0x20000")

K1_LDS = 163840
PRE = 2
PF = True
OOB = "0x40000000"

def gen_k1(a):
    ACC = 128; XA = 16; WA = 32; P = 48
    XB = 64
    WB = 76
    WTR = 96
    VXE, VXO, VW = 4, 5, 6
    a.label("k1_kernel")
    a("s_cmp_ge_u32 s2, 256")
    a("s_cbranch_scc1 k1_end")
    st = stamps.St(a, 0, "s41", "s10", "s11")
    st.start()
    a("s_load_dwordx4 s[4:7], s[0:1], 0")
    a("s_load_dwordx2 s[8:9], s[0:1], 24")
    a("s_load_dwordx4 s[12:15], s[0:1], 32")
    a("s_load_dwordx2 s[10:11], s[0:1], 64")
    a("s_getpc_b64 s[42:43]")
    a("s_add_u32 s42, s42, TF@rel32@lo+4")
    a("s_addc_u32 s43, s43, TF@rel32@hi+12")
    a("s_and_b32 s40, s2, 7")
    a("s_lshr_b32 s41, s2, 3")
    a("s_lshr_b32 s16, s40, 1")
    a("s_and_b32 s17, s40, 1")
    a("s_lshl_b32 s17, s17, 3")
    a("s_and_b32 s44, s41, 7")
    a("s_or_b32 s17, s17, s44")
    a("s_lshr_b32 s18, s41, 3")
    a("v_lshrrev_b32 v7, 6, v0")
    a("v_and_b32 v1, 63, v0")
    a("v_readfirstlane_b32 s19, v7")
    a("v_and_b32 v2, 31, v1")
    a("v_lshrrev_b32 v3, 5, v1")
    a("s_nop 0")
    a("s_mov_b32 s41, s19")
    a("s_and_b32 s19, s19, 3")
    a("s_cmp_lt_u32 s41, 4")
    a("s_cbranch_scc1 k1_cons")
    a("s_cmp_eq_u32 s16, 3")
    a("s_mov_b32 s44, 896")
    a("s_cselect_b32 s44, 57344, s44")
    a("s_mov_b32 s47, 2688")
    a("s_cselect_b32 s47, 896, s47")
    a("s_mov_b32 s45, 8*896")
    a("s_cselect_b32 s45, 512*896, s45")
    a("s_lshl_b32 s48, s17, 7")
    a("s_lshl_b32 s49, s19, 5")
    a("s_add_u32 s48, s48, s49")
    a("s_lshl_b32 s49, s17, 2")
    a("s_add_u32 s49, s49, s19")
    a("s_cmp_eq_u32 s16, 3")
    a("s_cselect_b32 s48, s49, s48")
    a("s_mul_i32 s56, s48, 896")
    a("s_add_u32 s57, s56, s45")
    a("s_add_u32 s58, s57, s45")
    a("s_add_u32 s59, s58, s45")
    a("s_lshl_b32 s60, s19, 4")
    a("s_mul_i32 s60, s60, s47")
    a("s_lshl_b32 s46, s47, 2")
    a("s_add_u32 s61, s60, s46")
    a("s_add_u32 s62, s61, s46")
    a("s_add_u32 s63, s62, s46")
    a("s_lshl_b32 s46, s47, 6")
    a("s_lshl_b32 s55, s19, 12")
    a("v_lshrrev_b32 v7, 3, v1")
    a("v_and_b32 v8, 7, v1")
    a("v_lshrrev_b32 v9, 1, v7")
    a("v_xor_b32 v8, v8, v9")
    a("v_mul_lo_u32 v7, v7, s44")
    a(f"v_lshl_add_u32 v{VXE}, v8, 4, v7")
    a("v_xor_b32 v8, 4, v8")
    a(f"v_lshl_add_u32 v{VXO}, v8, 4, v7")
    a("v_lshrrev_b32 v7, 4, v1")
    a("v_and_b32 v8, 15, v1")
    a("v_lshlrev_b32 v9, 2, v7")
    a("v_xor_b32 v8, v8, v9")
    a("v_mul_lo_u32 v7, v7, s47")
    a(f"v_lshl_add_u32 v{VW}, v8, 4, v7")
    a("v_cmp_gt_u32 vcc, 14, v8")
    a(f"v_mov_b32 v9, {OOB}")
    a("s_and_b32 s64, s2, 7")
    a(f"v_cndmask_b32 v{VW}, v9, v{VW}, vcc")
    a("s_lshr_b32 s65, s2, 3")
    a("s_lshl_b32 s64, s64, 1")
    a("s_and_b32 s66, s65, 1")
    a("s_or_b32 s64, s64, s66")
    a("s_bfe_u32 s66, s65, 0x20001")
    a("s_lshr_b32 s65, s65, 3")
    a("s_lshl_b32 s67, s64, 7")
    a("s_lshl_b32 s50, s66, 3")
    a("s_add_u32 s67, s67, s50")
    a("s_mul_i32 s50, s67, 450")
    a("s_mul_i32 s65, s65, 58")
    a("s_min_u32 s65, s65, 167")
    a("s_lshl_b32 s67, s65, 1")
    a("s_add_u32 s50, s50, s67")
    a("s_add_u32 s51, s50, 14400")
    a("s_add_u32 s52, s50, 28800")
    a("s_add_u32 s53, s50, 43200")
    a("v_and_b32 v0, 255, v0")
    a("v_lshrrev_b32 v12, 3, v0")
    a("v_and_b32 v13, 7, v0")
    a("v_mul_u32_u24 v10, 450, v13")
    a("v_lshl_add_u32 v10, v12, 2, v10")
    a("v_cmp_gt_u32 vcc, 29, v12")
    a("v_lshlrev_b32 v11, 14, v12")
    a("v_lshl_add_u32 v11, v13, 4, v11")
    a("v_cndmask_b32 v10, v9, v10, vcc")
    a("v_cndmask_b32 v11, v9, v11, vcc")
    a("s_lshl_b32 s67, s65, 13")
    a("s_lshl_b32 s64, s64, 9")
    a("v_add_u32 v14, 8192, v11")
    a("s_add_u32 s64, s64, s67")
    a("s_lshl_b32 s66, s66, 7")
    a("s_add_u32 s64, s64, s66")
    a(f"s_add_u32 s64, s64, {WT}")
    a("s_waitcnt lgkmcnt(0)")
    st.stamp()
    a("s_cmp_eq_u32 s16, 3")
    a("s_cselect_b32 s48, s8, s4")
    a("s_cselect_b32 s49, s9, s5")
    srd(a, 20, "s48", "s49", S*D*2)
    a("s_mul_i32 s66, s16, 896")
    a("s_mul_i32 s67, s18, 224")
    a("s_add_u32 s66, s66, s67")
    a("s_cmp_eq_u32 s16, 3")
    a("s_cselect_b32 s66, s67, s66")
    a("s_cselect_b32 s48, s42, s6")
    a("s_cselect_b32 s49, s43, s7")
    a(f"s_mov_b32 s67, {448*2688}")
    a(f"s_cselect_b32 s67, {448*896}, s67")
    a("s_add_u32 s48, s48, s66")
    a("s_addc_u32 s49, s49, 0")
    a("s_sub_u32 s67, s67, s66")
    srd(a, 24, "s48", "s49", "s67")

    def dma_chunk(c):
        so = (c % 5) * 32768
        for u in range(4):
            a(f"s_add_u32 m0, s55, {so + u*1024}")
            a("s_nop 0" if u == 0 else f"s_add_u32 s{56+u-1}, s{56+u-1}, 128")
            a(f"buffer_load_dwordx4 v{VXE if u % 2 == 0 else VXO}, s[20:23], s{56+u} offen lds")
        for u in range(4):
            a(f"s_add_u32 m0, s55, {so + 16384 + u*1024}")
            a("s_add_u32 s59, s59, 128" if u == 0 else f"s_add_u32 s{60+u-1}, s{60+u-1}, s46")
            a(f"buffer_load_dwordx4 v{VW}, s[24:27], s{60+u} offen lds")
        a("s_add_u32 s63, s63, s46")
    issued_wt = [False]
    for c in range(PRE): dma_chunk(c)
    st.stamp()
    srd(a, 32, "s12", "s13", S*225*2)
    srd(a, 36, "s14", "s15", S*225*2)
    srd(a, 28, "s10", "s11", WS_USED)
    a("s_mov_b32 s70, 0x05040100")
    a("s_mov_b32 s71, 0x07060302")
    def wt_loads():
        so = ["s50", "s51", "s52", "s53"]
        for part in range(2):
            for b in range(4):
                a(f"buffer_load_dword v{WTR + part*4 + b}, v10, s[{32+4*part}:{35+4*part}], {so[b]} offen")
    def wt_out():
        for b in range(4):
            a(f"v_perm_b32 v{WTR+8+b}, v{WTR+4+b}, v{WTR+b}, s70")
            a(f"v_perm_b32 v{WTR+12+b}, v{WTR+4+b}, v{WTR+b}, s71")
        a(f"buffer_store_dwordx4 {vr(WTR+8,4)}, v11, s[28:31], s64 offen")
        a(f"buffer_store_dwordx4 {vr(WTR+12,4)}, v14, s[28:31], s64 offen")
    issued = PRE
    for c in range(7):
        wtl = 8 if (c > 7 - PRE - 1 + 0 and issued_wt[0]) else 0
        younger = (issued - 1 - c) * 8 + (8 if issued_wt[0] else 0)
        a(f"s_waitcnt vmcnt({younger})")
        a("s_barrier")
        if c in (0, 3): st.stamp()
        if issued < 7 and issued - 5 <= c - 2 + 0 + 0 or (issued < 5):
            dma_chunk(issued); issued += 1
        elif issued < 7:
            pass
        if issued == 7 and not issued_wt[0]:
            wt_loads(); issued_wt[0] = True
    assert issued == 7
    a("s_waitcnt vmcnt(0)")
    wt_out()
    st.finish()
    a("s_endpgm")
    a.label("k1_cons")
    st.n = 1
    if PF:
        a("s_lshr_b32 s50, s2, 3")
        a("s_and_b32 s51, s2, 1")
        a("s_lshl_b32 s52, s51, 10")
        a("s_lshl_b32 s53, s50, 5")
        a("s_add_u32 s52, s52, s53")
        a("s_lshl_b32 s53, s50, 6")
        a("s_lshl_b32 s54, s51, 5")
        a("s_add_u32 s53, s53, s54")
        a("s_cmp_eq_u32 s16, 3")
        a("s_cselect_b32 s52, s53, s52")
        a("s_mov_b32 s47, 2688")
        a("s_cselect_b32 s47, 896, s47")
        a("s_mul_i32 s52, s52, 896")
        a("s_mul_i32 s53, s19, 7168")
        a("s_add_u32 s52, s52, s53")
        a("s_mul_i32 s53, s50, 14")
        a("s_add_u32 s53, s53, s19")
        a("s_mul_i32 s53, s53, s47")
        a("s_mul_i32 s54, s16, 896")
        a("s_cselect_b32 s54, 0, s54")
        a("s_add_u32 s53, s53, s54")
        a("s_lshl_b32 s55, s47, 2")
        a("v_lshlrev_b32 v4, 4, v1")
        a(f"v_mov_b32 v5, {OOB}")
        a("v_cmp_gt_u32 vcc, 56, v1")
        a("s_nop 1")
        a("v_cndmask_b32 v5, v5, v4, vcc")
    a("s_waitcnt lgkmcnt(0)")
    st.stamp()
    if PF:
        a("s_cmp_eq_u32 s16, 3")
        a("s_cselect_b32 s48, s8, s4")
        a("s_cselect_b32 s49, s9, s5")
        srd(a, 20, "s48", "s49", S*D*2)
        a("s_cselect_b32 s48, s42, s6")
        a("s_cselect_b32 s49, s43, s7")
        a(f"s_mov_b32 s56, {448*2688}")
        a(f"s_cselect_b32 s56, {448*896}, s56")
        srd(a, 24, "s48", "s49", "s56")
        for k in range(4):
            a(f"buffer_load_dwordx4 {vr(196+4*k,4)}, v5, s[24:27], s53 offen")
            if k < 3: a("s_add_u32 s53, s53, s55")
        for k in range(7):
            if k == 4: a("s_add_u32 s52, s52, 4096")
            a(f"buffer_load_dwordx4 {vr(212+4*k,4)}, v4, s[20:23], s52 offen offset:{(k%4)*1024}")
    srd(a, 28, "s10", "s11", WS_USED)
    a("s_lshr_b32 s68, s19, 1")
    a("s_and_b32 s69, s19, 1")
    a("v_lshrrev_b32 v7, 1, v2")
    a("v_and_b32 v7, 7, v7")
    a("s_lshl_b32 s70, s68, 13")
    a("v_lshlrev_b32 v8, 7, v2")
    a("v_add_u32 v8, s70, v8")
    for k in range(4):
        a(f"v_add_u32 v9, {2*k}, v3")
        a("v_xor_b32 v9, v9, v7")
        a(f"v_lshl_add_u32 v{XB+k}, v9, 4, v8")
        a(f"v_add_u32 v{XB+4+k}, 0x10000, v{XB+k}")
        a(f"v_add_u32 v{XB+8+k}, 0x20000, v{XB+k}")
    a("v_and_b32 v7, 15, v1")
    a("v_lshrrev_b32 v7, 2, v7")
    a("v_and_b32 v8, 3, v1")
    a("v_bfe_u32 v9, v1, 4, 1")
    a("v_lshlrev_b32 v9, 5, v9")
    a("v_lshl_add_u32 v8, v8, 3, v9")
    a("s_mul_i32 s70, s69, 112")
    a("v_add_u32 v8, s70, v8")
    a("v_lshl_add_u32 v9, v3, 3, v7")
    a("v_lshlrev_b32 v9, 8, v9")
    a("v_lshlrev_b32 v7, 2, v7")
    for g in range(2):
        a(f"v_add_u32 v12, {56*g}, v8")
        a("v_lshrrev_b32 v13, 4, v12")
        a("v_xor_b32 v13, v13, v7")
        a("v_and_b32 v12, 15, v12")
        a("v_lshl_add_u32 v13, v13, 4, v12")
        a(f"v_add_u32 v{WB+g}, v13, v9")
        a(f"v_add_u32 v{WB+2+g}, 0x10000, v{WB+g}")
        a(f"v_add_u32 v{WB+4+g}, 0x20000, v{WB+g}")
    for r in range(64):
        a(f"v_mov_b32 v{ACC+r}, 0")

    def reads(t):
        c, k = t // 4, t % 4
        slot = c % 5
        st_ = slot >> 1; so = (slot & 1) * 32768
        b = t % 2
        for tbi in range(2):
            a(f"ds_read_b128 {vr(XA+8*b+4*tbi,4)}, v{XB+4*st_+k} offset:{so+tbi*4096}")
        for g in range(2):
            o = so + 16384 + k*4096
            a(f"ds_read_b64_tr_b16 {vr(WA+8*b+4*g,2)}, v{WB+2*st_+g} offset:{o}")
            a(f"ds_read_b64_tr_b16 {vr(WA+8*b+4*g+2,2)}, v{WB+2*st_+g} offset:{o+1024}")

    def chunk_wait(c):
        a("s_barrier")
        if c in (0, 1, 2, 3, 4, 6): st.stamp()

    def mainloop(order):
        chunk_wait(0)
        reads(0)
        for t in range(28):
            if t + 1 < 28:
                if (t + 1) % 4 == 0:
                    chunk_wait((t + 1) // 4)
                reads(t + 1)
                a("s_waitcnt lgkmcnt(6)")
            else:
                a("s_waitcnt lgkmcnt(0)")
            b = t % 2
            for tbi in range(2):
                for g in range(2):
                    x = vr(XA+8*b+4*tbi, 4); w = vr(WA+8*b+4*g, 4); d = vr(ACC+16*(2*tbi+g), 16)
                    if order == "WX":
                        a(f"v_mfma_f32_32x32x16_bf16 {d}, {w}, {x}, {d}")
                    else:
                        a(f"v_mfma_f32_32x32x16_bf16 {d}, {x}, {w}, {d}")
        st.stamp()

    a("s_lshl_b32 s71, s17, 2")
    a("s_lshl_b32 s72, s68, 1")
    a("s_add_u32 s71, s71, s72")
    a("s_lshl_b32 s72, s18, 2")
    a("s_lshl_b32 s73, s69, 1")
    a("s_add_u32 s72, s72, s73")
    n_save = st.n
    a("s_cmp_ge_u32 s16, 2")
    a("s_cbranch_scc1 k1_vb")
    mainloop("WX")
    a("s_mov_b32 s66, 0")
    a("s_mov_b32 s67, -1")
    a(f"s_mov_b32 s68, {f2u(CQ):#x}")
    a("s_cmp_eq_u32 s16, 0")
    a("s_cselect_b32 s68, s68, 1.0")
    a("s_mov_b32 s69, s68")
    a("s_cmp_eq_u32 s16, 1")
    a("s_cselect_b64 s[44:45], s[66:67], 0")
    a("s_lshl_b32 s70, s72, 6")
    a("s_add_u32 s70, s70, s71")
    a("s_lshl_b32 s70, s70, 11")
    a("s_lshl_b32 s73, s16, 21")
    a("s_add_u32 s70, s70, s73")
    a("v_lshlrev_b32 v4, 4, v1")
    a("v_mov_b32 v5, 1.0")
    a("s_nop 2")
    for tbi in range(2):
        for g in range(2):
            ti = 2*tbi + g
            d = ACC + 16*ti
            for r in range(0, 16, 2):
                a(f"v_pk_mul_f32 {vr(d+r,2)}, {vr(d+r,2)}, s[68:69]")
            for r in range(12, 16):
                a(f"v_cndmask_b32 v{d+r}, v{d+r}, 0, s[66:67]")
            n = 100 + 2*ti + 12
            a(f"v_pk_mul_f32 {vr(n,2)}, {vr(d,2)}, {vr(d,2)}")
            for r in range(2, 16, 2):
                a(f"v_pk_fma_f32 {vr(n,2)}, {vr(d+r,2)}, {vr(d+r,2)}, {vr(n,2)}")
            a(f"v_cndmask_b32 v{d+12}, v{d+12}, v5, s[44:45]")
            a(f"v_add_f32 v{n}, v{n}, v{n+1}")
            for q in range(8):
                a(f"v_cvt_pk_bf16_f32 v{P+8*ti+q}, v{d+2*q}, v{d+2*q+1}")
            off = g*131072 + tbi*2048
            a(f"s_add_u32 s73, s70, {off}")
            a(f"buffer_store_dwordx4 {vr(P+8*ti,4)}, v4, s[28:31], s73 offen")
            a(f"buffer_store_dwordx4 {vr(P+8*ti+4,4)}, v4, s[28:31], s73 offen offset:1024")
    N0 = 112
    for ti in range(4):
        a(f"v_mov_b32 v{N0+2*ti+1}, v{N0+2*ti}")
    a("s_nop 0")
    for ti in range(4):
        a(f"v_permlane32_swap_b32 v{N0+2*ti}, v{N0+2*ti+1}")
    for ti in range(4):
        a(f"v_add_f32 v{N0+2*ti}, v{N0+2*ti}, v{N0+2*ti+1}")
    for sh in (1, 2, 4, 8):
        for ti in range(4):
            a(f"v_max_f32_dpp v{N0+2*ti}, v{N0+2*ti}, v{N0+2*ti} row_shr:{sh} row_mask:0xf bank_mask:0xf")
    for ti in range(4):
        a(f"v_readlane_b32 s{56+2*ti}, v{N0+2*ti}, 15")
        a(f"v_readlane_b32 s{57+2*ti}, v{N0+2*ti}, 31")
    a("s_nop 1")
    for ti in range(4):
        a(f"s_max_u32 s{56+2*ti}, s{56+2*ti}, s{57+2*ti}")
    for ti in range(4):
        a(f"v_writelane_b32 v110, s{56+2*ti}, {ti}")
    a("s_lshl_b32 s70, s16, 4")
    a("s_add_u32 s70, s70, s72")
    a("s_lshl_b32 s70, s70, 8")
    a("s_lshl_b32 s73, s71, 2")
    a("s_add_u32 s70, s70, s73")
    a(f"s_add_u32 s70, s70, {NRM}")
    a("v_and_b32 v4, 1, v1")
    a("v_lshlrev_b32 v4, 8, v4")
    a("v_lshrrev_b32 v6, 1, v1")
    a("v_lshl_add_u32 v4, v6, 2, v4")
    a(f"v_mov_b32 v5, {OOB}")
    a("v_cmp_gt_u32 vcc, 4, v1")
    a("s_nop 1")
    a("v_cndmask_b32 v4, v5, v4, vcc")
    a("buffer_store_dword v110, v4, s[28:31], s70 offen")
    a("s_branch k1_fin")
    a.label("k1_vb")
    st.n = n_save
    mainloop("XW")
    a("s_cmp_eq_u32 s16, 3")
    a("s_cbranch_scc1 k1_b1")
    a("v_mov_b32 v5, 0x3f803f80")
    a("v_cmp_eq_u32 vcc, 28, v2")
    a("v_mov_b32 v6, 0")
    a("v_cmp_lt_u32 s[44:45], 27, v2")
    a("s_lshl_b32 s70, s72, 6")
    a("v_cndmask_b32 v6, v6, v5, vcc")
    a("s_add_u32 s70, s70, s71")
    a("s_lshl_b32 s70, s70, 11")
    a(f"s_add_u32 s70, s70, {VF}")
    a("v_lshlrev_b32 v4, 4, v1")
    a("s_nop 3")
    for tbi in range(2):
        for g in range(2):
            ti = 2*tbi + g
            d = ACC + 16*ti
            for q in range(8):
                a(f"v_cvt_pk_bf16_f32 v{P+8*ti+q}, v{d+2*q}, v{d+2*q+1}")
            for q in range(8):
                a(f"v_cndmask_b32 v{P+8*ti+q}, v{P+8*ti+q}, v6, s[44:45]")
            off = g*131072 + tbi*2048
            a(f"s_add_u32 s73, s70, {off}")
            a(f"buffer_store_dwordx4 {vr(P+8*ti,4)}, v4, s[28:31], s73 offen")
            a(f"buffer_store_dwordx4 {vr(P+8*ti+4,4)}, v4, s[28:31], s73 offen offset:1024")
    a("s_branch k1_fin")
    a.label("k1_b1")
    a("v_lshlrev_b32 v4, 12, v2")
    a("v_lshl_add_u32 v4, v3, 4, v4")
    a(f"v_mov_b32 v5, {OOB}")
    a("v_cmp_gt_u32 vcc, 28, v2")
    a("s_mul_i32 s70, s72, 28*4096")
    a("s_lshl_b32 s73, s71, 6")
    a("v_cndmask_b32 v4, v5, v4, vcc")
    a("s_add_u32 s70, s70, s73")
    a(f"s_add_u32 s70, s70, {ZF}")
    a("s_nop 3")
    for tbi in range(2):
        for g in range(2):
            ti = 2*tbi + g
            d = ACC + 16*ti
            for q in range(8):
                a(f"v_cvt_pk_bf16_f32 v{P+8*ti+q}, v{d+2*q}, v{d+2*q+1}")
            off = g*28*4096 + tbi*64
            a(f"s_add_u32 s73, s70, {off}")
            a(f"buffer_store_dwordx4 {vr(P+8*ti,4)}, v4, s[28:31], s73 offen")
            a(f"buffer_store_dwordx4 {vr(P+8*ti+4,4)}, v4, s[28:31], s73 offen offset:32")
    a.label("k1_fin")
    st.finish()
    a.label("k1_end")
    a("s_endpgm")

def desc(name, vgpr, sgpr=102):
    return f""".section .rodata,"a"
.p2align 6
.amdhsa_kernel {name}
  .amdhsa_next_free_vgpr {vgpr}
  .amdhsa_next_free_sgpr {sgpr}
  .amdhsa_accum_offset {(vgpr+3)//4*4}
  .amdhsa_group_segment_fixed_size 0
  .amdhsa_kernarg_size 72
  .amdhsa_user_sgpr_count 2
  .amdhsa_user_sgpr_kernarg_segment_ptr 1
  .amdhsa_system_sgpr_workgroup_id_x 1
  .amdhsa_float_denorm_mode_32 3
.end_amdhsa_kernel
"""
```

```python
from asmlib import *
from common import *
import stamps
from k1 import srd

B2BASE = 65536
TB2_F32 = 0; TB2_F64 = 6144; TB2_TW1 = 30720; TB2_TW2 = 47104; TB2_SIZE = 63488
LDS_W = B2BASE + TB2_SIZE
LDS_MX = LDS_W + 8192
K2_LDS = LDS_MX + 4096
NB0 = [17, 17, 17, 13]
NB1 = [17, 17, 17, 13]
BMAX = 48.0

Q0 = 8; Q1 = 16; KB_ = [24, 32]; VB_ = [40, 48]; S0 = 64; S1 = 80; P0 = 96; P1 = 104; O0 = 112; O1 = 128

def mf(d, a_, b_, c):
    return f"v_mfma_f32_32x32x16_bf16 {d}, {a_}, {b_}, {c}"

def expcvt(a, S, P, grp):
    r = S + 4*grp
    for k in range(4):
        a(f"v_exp_f32 v{r+k}, v{r+k}")
    a(f"v_cvt_pk_bf16_f32 v{P+2*grp}, v{r}, v{r+1}")
    a(f"v_cvt_pk_bf16_f32 v{P+2*grp+1}, v{r+2}, v{r+3}")

def block(a, par):
    Kc, Kn = KB_[par], KB_[1-par]
    Vc, Vp = VB_[par], VB_[1-par]
    s0 = vr(S0, 16); s1 = vr(S1, 16); o0 = vr(O0, 16); o1 = vr(O1, 16)
    a(mf(s1, vr(Kc, 4), vr(Q1, 4), "0"))
    expcvt(a, S0, P0, 0)
    a(mf(s1, vr(Kc+4, 4), vr(Q1+4, 4), s1))
    expcvt(a, S0, P0, 1)
    a(f"buffer_load_dwordx4 {vr(Kc,4)}, v2, s[4:7], s18 offen")
    a(f"buffer_load_dwordx4 {vr(Kc+4,4)}, v2, s[4:7], s18 offen offset:1024")
    a(mf(o1, vr(Vp, 4), vr(P1, 4), o1))
    expcvt(a, S0, P0, 2)
    a(mf(o1, vr(Vp+4, 4), vr(P1+4, 4), o1))
    a(f"buffer_load_dwordx4 {vr(Vp,4)}, v2, s[4:7], s19 offen")
    a(f"buffer_load_dwordx4 {vr(Vp+4,4)}, v2, s[4:7], s19 offen offset:1024")
    expcvt(a, S0, P0, 3)
    a("s_waitcnt vmcnt(6)")
    a(mf(s0, vr(Kn, 4), vr(Q0, 4), "0"))
    expcvt(a, S1, P1, 0)
    a(mf(s0, vr(Kn+4, 4), vr(Q0+4, 4), s0))
    a("s_add_u32 s18, s18, 2048")
    a("s_add_u32 s19, s19, 2048")
    expcvt(a, S1, P1, 1)
    a("s_waitcnt vmcnt(4)")
    a(mf(o0, vr(Vc, 4), vr(P0, 4), o0))
    expcvt(a, S1, P1, 2)
    a(mf(o0, vr(Vc+4, 4), vr(P0+4, 4), o0))
    a("s_sub_u32 s17, s17, 1")
    expcvt(a, S1, P1, 3)

def cmulw_stage(a, Cre, Cim, Dre, Dim, vbase, off0, T):
    for q in range(4):
        a(f"ds_read_b128 {vr(T+4*q,4)}, v{vbase} offset:{off0+q*1024}")
    U = T + 16
    t = T + 32
    for q in range(4):
        a(f"s_waitcnt lgkmcnt({3-q})")
        for b in range(4):
            a(f"v_lshlrev_b32 v{U+b}, 16, v{T+4*q+b}")
            a(f"v_and_b32 v{U+4+b}, 0xffff0000, v{T+4*q+b}")
        for h in range(2):
            re = vr(Cre+4*q+2*h, 2)
            c = vr(U+2*h, 2); s = vr(U+4+2*h, 2)
            t1 = vr(t+4*h, 2); t2 = vr(t+4*h+2, 2)
            a(f"v_pk_mul_f32 {t1}, {re}, {c}")
            a(f"v_pk_mul_f32 {t2}, {re}, {s}")
        for h in range(2):
            im = vr(Cim+4*q+2*h, 2)
            c = vr(U+2*h, 2); s = vr(U+4+2*h, 2)
            t1 = vr(t+4*h, 2); t2 = vr(t+4*h+2, 2)
            a(f"v_pk_fma_f32 {t1}, {im}, {s}, {t1} neg_lo:[1,0,0] neg_hi:[1,0,0]")
            a(f"v_pk_fma_f32 {t2}, {im}, {c}, {t2}")
        for h in range(2):
            a(f"v_cvt_pk_bf16_f32 v{Dre+2*q+h}, v{t+4*h}, v{t+4*h+1}")
            a(f"v_cvt_pk_bf16_f32 v{Dim+2*q+h}, v{t+4*h+2}, v{t+4*h+3}")

def cmul_stage(a, Cre, Cim, Dre, Dim, vbase, off0, T, lgkm_pre=0):
    for q in range(4):
        a(f"ds_read_b128 {vr(T+8*q,4)}, v{vbase} offset:{off0+(2*q)*1024}")
        a(f"ds_read_b128 {vr(T+8*q+4,4)}, v{vbase} offset:{off0+(2*q+1)*1024}")
    t = T + 32
    for q in range(4):
        a(f"s_waitcnt lgkmcnt({2*(3-q)})")
        for h in range(2):
            re = vr(Cre+4*q+2*h, 2); im = vr(Cim+4*q+2*h, 2)
            c = vr(T+8*q+2*h, 2); s = vr(T+8*q+4+2*h, 2)
            t1 = vr(t+4*h, 2); t2 = vr(t+4*h+2, 2)
            a(f"v_pk_mul_f32 {t1}, {re}, {c}")
            a(f"v_pk_mul_f32 {t2}, {re}, {s}")
        for h in range(2):
            re = vr(Cre+4*q+2*h, 2); im = vr(Cim+4*q+2*h, 2)
            c = vr(T+8*q+2*h, 2); s = vr(T+8*q+4+2*h, 2)
            t1 = vr(t+4*h, 2); t2 = vr(t+4*h+2, 2)
            a(f"v_pk_fma_f32 {t1}, {im}, {s}, {t1} neg_lo:[1,0,0] neg_hi:[1,0,0]")
            a(f"v_pk_fma_f32 {t2}, {im}, {c}, {t2}")
        for h in range(2):
            a(f"v_cvt_pk_bf16_f32 v{Dre+2*q+h}, v{t+4*h}, v{t+4*h+1}")
            a(f"v_cvt_pk_bf16_f32 v{Dim+2*q+h}, v{t+4*h+2}, v{t+4*h+3}")

def gen_b2(a):
    ZR = 8; ZI = 24
    CRE = [64, 80]; CIM = [96, 112]
    DRE = 128; DIM = 144
    CF = 160
    T = 208
    VB0 = 4; VB1 = 5; VZ = 6; VZI = 7
    NOP = "s_nop 7\ns_nop 3"
    a.c("---- B2: FFT - filter - IFFT of column s2 ----")
    a("s_setprio 2")
    a("s_lshl_b32 s20, s2, 1")
    a("s_cmp_eq_u32 s2, 224")
    a("s_cselect_b32 s20, 1, s20")
    a("s_lshl_b32 s21, s2, 1")
    a("s_add_u32 s21, s21, 1")
    a("s_lshl_b32 s20, s20, 12")
    a("s_lshl_b32 s21, s21, 12")
    a("s_cmp_eq_u32 s2, 224")
    a("s_cselect_b32 s21, 0x40000000, s21")
    a("s_cmp_eq_u32 s2, 0")
    a("s_cselect_b32 s21, 0x40000000, s21")
    a("v_and_b32 v3, 31, v1")
    a(f"v_lshrrev_b32 v{VZ}, 5, v1")
    a(f"v_lshlrev_b32 v{VZ}, 4, v{VZ}")
    a(f"v_lshl_add_u32 v{VZ}, v3, 6, v{VZ}")
    a(f"s_add_u32 s22, s20, {ZF}")
    a(f"s_add_u32 s23, s21, {ZF}")
    for mt in range(2):
        for ks in range(2):
            a(f"buffer_load_dwordx4 {vr(ZR+4*(2*mt+ks),4)}, v{VZ}, s[4:7], s22 offen offset:{mt*2048+ks*32}")
    for mt in range(2):
        for ks in range(2):
            a(f"buffer_load_dwordx4 {vr(ZI+4*(2*mt+ks),4)}, v{VZ}, s[4:7], s23 offen offset:{mt*2048+ks*32}")
    def dma(srd_, goff_sreg_init, ldsoff, n):
        a(f"s_mov_b32 s24, {goff_sreg_init}")
        a(f"s_mov_b32 m0, {ldsoff}")
        for k in range(n):
            if k and k % 4 == 0:
                a("s_add_u32 s24, s24, 4096")
                a("s_add_u32 m0, m0, 4096")
            if k % 4 == 0:
                a("s_nop 0")
            a(f"buffer_load_dwordx4 v2, {srd_}, s24 offen offset:{(k%4)*1024} lds")
    dma("s[8:11]", TB2_F32, B2BASE + TB2_F32, 6)
    dma("s[8:11]", TB2_TW1, B2BASE + TB2_TW1, 16)
    dma("s[8:11]", TB2_F64, B2BASE + TB2_F64, 24)
    a(f"v_add_u32 v{VB0}, {B2BASE}, v2")
    a(f"v_add_u32 v{VB1}, {LDS_W}, v2")
    a("s_waitcnt vmcnt(40)")
    a("s_lshl_b32 s25, s2, 13")
    a(f"s_add_u32 s25, s25, {WT}")
    dma("s[4:7]", "s25", LDS_W, 8)
    for f in range(6):
        a(f"ds_read_b128 {vr(CF+4*f,4)}, v{VB0} offset:{TB2_F32+f*1024}")
    a("s_waitcnt lgkmcnt(0)")
    Fr = [vr(CF, 4), vr(CF+4, 4)]; Fi = [vr(CF+8, 4), vr(CF+12, 4)]; nFi = [vr(CF+16, 4), vr(CF+20, 4)]
    for mt in range(2):
        cre = vr(CRE[mt], 16); cim = vr(CIM[mt], 16)
        zr = [vr(ZR+4*(2*mt+ks), 4) for ks in range(2)]; zi = [vr(ZI+4*(2*mt+ks), 4) for ks in range(2)]
        a(mf(cre, zr[0], Fr[0], "0")); a(mf(cim, zr[0], Fi[0], "0"))
        a(mf(cre, zr[1], Fr[1], cre)); a(mf(cim, zr[1], Fi[1], cim))
        a(mf(cre, zi[0], nFi[0], cre)); a(mf(cim, zi[0], Fr[0], cim))
        a(mf(cre, zi[1], nFi[1], cre)); a(mf(cim, zi[1], Fr[1], cim))
    a("s_waitcnt vmcnt(32)")
    a(NOP)
    for mt in range(2):
        cmul_stage(a, CRE[mt], CIM[mt], DRE+8*mt, DIM+8*mt, VB0, TB2_TW1 + mt*8192, T)
    dma("s[8:11]", TB2_TW2, B2BASE + TB2_TW2, 16)
    a("s_waitcnt vmcnt(24)")
    def big_step(data_is_A, conj):
        seq = [(lt, kap) for lt in range(2) for kap in range(4)]
        def rd(idx):
            lt, kap = seq[idx]
            buf = CF + 12*(idx % 4)
            for v in range(3):
                a(f"ds_read_b128 {vr(buf+4*v,4)}, v{VB0} offset:{TB2_F64+((lt*4+kap)*3+v)*1024}")
        rd(0); rd(1); rd(2)
        for idx, (lt, kap) in enumerate(seq):
            rem = min(len(seq)-1-idx, 2)
            a(f"s_waitcnt lgkmcnt({3*rem})")
            buf = CF + 12*(idx % 4)
            fr, fi, nfi = vr(buf, 4), vr(buf+4, 4), vr(buf+8, 4)
            dre = vr(DRE+4*kap, 4); dim = vr(DIM+4*kap, 4)
            cre = vr(CRE[lt], 16); cim = vr(CIM[lt], 16)
            c0 = "0" if kap == 0 else None
            x1, x2 = (fi, nfi) if conj else (nfi, fi)
            def m(d, k, x, c):
                return mf(d, x, k, c) if data_is_A else mf(d, k, x, c)
            a(m(cre, fr, dre, c0 or cre))
            a(m(cim, x2, dre, c0 or cim))
            a(m(cre, x1, dim, cre))
            a(m(cim, fr, dim, cim))
            if idx + 3 < len(seq):
                rd(idx + 3)
    big_step(False, False)
    a("s_waitcnt vmcnt(16)")
    a(NOP)
    for mt in range(2):
        cmulw_stage(a, CRE[mt], CIM[mt], DRE+8*mt, DIM+8*mt, VB1, mt*4096, T)
    a("s_nop 1")
    big_step(True, True)
    a("s_waitcnt vmcnt(0)")
    for f in range(6):
        a(f"ds_read_b128 {vr(CF+4*f,4)}, v{VB0} offset:{TB2_F32+f*1024}")
    a(NOP)
    for nt in range(2):
        cmul_stage(a, CRE[nt], CIM[nt], DRE+8*nt, DIM+8*nt, VB0, TB2_TW2 + nt*8192, T)
    a("s_nop 1")
    for nt in range(2):
        cre = vr(CRE[nt], 16); cim = vr(CIM[nt], 16)
        dr = [vr(DRE+8*nt+4*ks, 4) for ks in range(2)]; di = [vr(DIM+8*nt+4*ks, 4) for ks in range(2)]
        a(mf(cre, dr[0], Fr[0], "0")); a(mf(cim, dr[0], nFi[0], "0"))
        a(mf(cre, dr[1], Fr[1], cre)); a(mf(cim, dr[1], nFi[1], cim))
        a(mf(cre, di[0], Fi[0], cre)); a(mf(cim, di[0], Fr[0], cim))
        a(mf(cre, di[1], Fi[1], cre)); a(mf(cim, di[1], Fr[1], cim))
    a("v_and_b32 v3, 31, v1")
    a(f"v_lshrrev_b32 v{VZ}, 5, v1")
    a(f"v_lshlrev_b32 v{VZ}, 4, v{VZ}")
    a(f"v_lshl_add_u32 v{VZ}, v3, 7, v{VZ}")
    a(f"s_add_u32 s22, s20, {ZT}")
    a(f"s_add_u32 s23, s21, {ZT}")
    a(NOP)
    for part, (C, so) in enumerate(((CRE, "s22"), (CIM, "s23"))):
        for nt in range(2):
            Pk = DRE + 16*part + 8*nt
            for q in range(8):
                a(f"v_cvt_pk_bf16_f32 v{Pk+q}, v{C[nt]+2*q}, v{C[nt]+2*q+1}")
            a("s_nop 1")
            for m in range(2):
                a(f"v_permlane32_swap_b32 v{Pk+4*m}, v{Pk+4*m+2}")
                a(f"v_permlane32_swap_b32 v{Pk+4*m+1}, v{Pk+4*m+3}")
            for m in range(2):
                a(f"buffer_store_dwordx4 {vr(Pk+4*m,4)}, v{VZ}, s[4:7], {so} offen offset:{nt*64+m*32}")
    a("s_setprio 0")

WITH_B2 = True
def gen_k2(a):
    with_b2 = WITH_B2
    a.label("k2_kernel")
    a("s_cmp_ge_u32 s2, 256")
    a("s_cbranch_scc1 k2_end")
    st = stamps.St(a, 1, "s26", "s62", "s63")
    st.start()
    a("s_load_dwordx2 s[12:13], s[0:1], 64")
    a("s_load_dwordx2 s[62:63], s[0:1], 64")
    a("s_getpc_b64 s[14:15]")
    a("s_add_u32 s14, s14, TB2@rel32@lo+4")
    a("s_addc_u32 s15, s15, TB2@rel32@hi+12")
    a("v_lshrrev_b32 v3, 6, v0")
    a("v_and_b32 v1, 63, v0")
    a("v_readfirstlane_b32 s26, v3")
    a("v_lshlrev_b32 v2, 4, v1")
    srd(a, 8, "s14", "s15", TB2_SIZE)
    a("s_waitcnt lgkmcnt(0)")
    srd(a, 4, "s12", "s13", WS_USED)
    st.stamp()
    if with_b2:
        a("s_cmp_lg_u32 s26, 7")
        a("s_cbranch_scc1 k2_attn")
        a("s_cmp_ge_u32 s2, 225")
        a("s_cbranch_scc1 k2_attn")
        gen_b2(a)
    a.label("k2_attn")
    st.stamp()
    a("s_and_b32 s27, s2, 7")
    a("s_lshr_b32 s28, s2, 3")
    a("s_lshl_b32 s15, s27, 1")
    a("s_and_b32 s29, s28, 1")
    a("s_or_b32 s15, s15, s29")
    a("s_lshr_b32 s16, s28, 1")
    a("s_and_b32 s13, s26, 3")
    a("s_lshr_b32 s14, s26, 2")
    a("s_lshl_b32 s30, s15, 8")
    a(f"s_add_u32 s31, s30, {NRM+4096}")
    a("s_lshl_b32 s29, s16, 4")
    a("s_add_u32 s30, s30, s29")
    a(f"s_add_u32 s30, s30, {NRM}")
    a("v_lshlrev_b32 v56, 2, v1")
    a("v_and_b32 v57, 3, v1")
    a("v_lshlrev_b32 v57, 2, v57")
    a("buffer_load_dword v58, v56, s[4:7], s31 offen")
    a("buffer_load_dword v59, v57, s[4:7], s30 offen")
    a("s_lshl_b32 s32, s15, 6")
    a("s_lshl_b32 s33, s16, 2")
    a("s_lshl_b32 s34, s14, 1")
    a("s_add_u32 s33, s33, s34")
    a("s_add_u32 s34, s32, s33")
    a("s_lshl_b32 s34, s34, 11")
    for t in range(2):
        for m in range(2):
            a(f"buffer_load_dwordx4 {vr(Q0+8*t+4*m,4)}, v2, s[4:7], s34 offen offset:{t*2048+m*1024}")
    assert NB0[:3] == [NB0[0]]*3 and NB1[:3] == [NB1[0]]*3
    a(f"s_mov_b32 s35, {NB0[0]}")
    a(f"s_cmp_eq_u32 s14, 1")
    a(f"s_cselect_b32 s35, {NB1[0]}, s35")
    a("s_mul_i32 s36, s35, s13")
    a("s_sub_u32 s17, 64, s36")
    a("s_min_u32 s17, s17, s35")
    a("s_cmp_eq_u32 s13, 3")
    a("s_cbranch_scc0 k2_cnt")
    a("s_sub_u32 s17, 64, s36")
    a.label("k2_cnt")
    a("s_add_u32 s36, s36, s32")
    a("s_lshl_b32 s36, s36, 11")
    a(f"s_add_u32 s18, s36, {KF}")
    a(f"s_add_u32 s19, s36, {VF}")
    a(f"buffer_load_dwordx4 {vr(KB_[0],4)}, v2, s[4:7], s18 offen")
    a(f"buffer_load_dwordx4 {vr(KB_[0]+4,4)}, v2, s[4:7], s18 offen offset:1024")
    a(f"buffer_load_dwordx4 {vr(KB_[1],4)}, v2, s[4:7], s18 offen offset:2048")
    a(f"buffer_load_dwordx4 {vr(KB_[1]+4,4)}, v2, s[4:7], s18 offen offset:3072")
    a(f"buffer_load_dwordx4 {vr(VB_[0],4)}, v2, s[4:7], s19 offen")
    a(f"buffer_load_dwordx4 {vr(VB_[0]+4,4)}, v2, s[4:7], s19 offen offset:1024")
    for r in range(32):
        a(f"v_mov_b32 v{O0+r}, 0")
    for r in range(8):
        a(f"v_mov_b32 v{P1+r}, 0")
        a(f"v_mov_b32 v{VB_[1]+r}, 0")
    a("s_waitcnt vmcnt(10)")
    st.stamp()
    for sh in (1, 2, 4, 8):
        a(f"v_max_u32_dpp v58, v58, v58 row_shr:{sh} row_mask:0xf bank_mask:0xf")
        a(f"v_max_u32_dpp v59, v59, v59 row_shr:{sh} row_mask:0xf bank_mask:0xf")
        a("s_nop 0")
    a("v_max_u32_dpp v58, v58, v58 row_bcast:15 row_mask:0xa bank_mask:0xf")
    a("s_nop 1")
    a("v_max_u32_dpp v58, v58, v58 row_bcast:31 row_mask:0xc bank_mask:0xf")
    a("s_nop 0")
    a("v_readlane_b32 s37, v58, 63")
    a("v_readlane_b32 s38, v59, 15")
    a("s_nop 1")
    a("v_mov_b32 v58, s37")
    a("v_mul_f32 v58, s38, v58")
    a("v_sqrt_f32 v58, v58")
    a(f"v_mov_b32 v59, {f2u(0.25):#x}")
    a(f"v_mov_b32 v60, {f2u(1.02):#x}")
    a("v_fma_f32 v58, v58, v60, v59")
    a("s_nop 0")
    a("v_readfirstlane_b32 s37, v58")
    a("s_nop 1")
    a(f"s_cmp_gt_u32 s37, {f2u(BMAX):#x}")
    a("s_cbranch_scc1 k2_slow")
    a("s_lshr_b32 s37, s37, 16")
    a("s_add_u32 s37, s37, 1")
    a("s_or_b32 s37, s37, 0x8000")
    a("s_waitcnt vmcnt(6)")
    a("s_mov_b32 exec_lo, 0")
    a(f"v_mov_b32 v{Q0+6}, s37")
    a(f"v_mov_b32 v{Q1+6}, s37")
    a("s_mov_b32 exec_lo, -1")
    a("s_add_u32 s18, s18, 4096")
    a("s_add_u32 s19, s19, 2048")
    a("s_waitcnt vmcnt(4)")
    a(mf(vr(S0, 16), vr(KB_[0], 4), vr(Q0, 4), "0"))
    a(mf(vr(S0, 16), vr(KB_[0]+4, 4), vr(Q0+4, 4), vr(S0, 16)))
    a("s_nop 7")
    a("s_nop 2")
    st.stamp()
    a.label("k2_loop")
    l0 = len(a.L)
    block(a, 0)
    a("s_cmp_eq_u32 s17, 0")
    a("s_cbranch_scc1 k2_exit0")
    block(a, 1)
    a("s_cmp_lg_u32 s17, 0")
    a("s_cbranch_scc1 k2_loop")
    loop_lines = a.L[l0:]
    a.loops = getattr(a, "loops", []) + [loop_lines]
    a(mf(vr(O1, 16), vr(VB_[1], 4), vr(P1, 4), vr(O1, 16)))
    a(mf(vr(O1, 16), vr(VB_[1]+4, 4), vr(P1+4, 4), vr(O1, 16)))
    a("s_branch k2_fin")
    a.label("k2_exit0")
    a(mf(vr(O1, 16), vr(VB_[0], 4), vr(P1, 4), vr(O1, 16)))
    a(mf(vr(O1, 16), vr(VB_[0]+4, 4), vr(P1+4, 4), vr(O1, 16)))
    a.label("k2_fin")
    a("s_nop 7")
    a("s_nop 3")
    a.label("k2_red")
    st.stamp()
    a("s_lshl_b32 s37, s26, 13")
    a("v_add_u32 v56, s37, v2")
    for t in range(2):
        for q in range(4):
            a(f"ds_write_b128 v56, {vr(O0+16*t+4*q,4)} offset:{(t*4+q)*1024}")
    a("s_lshr_b32 s38, s13, 1")
    a("s_and_b32 s39, s13, 1")
    a("s_lshl_b32 s40, s14, 15")
    a("s_lshl_b32 s41, s38, 12")
    a("s_add_u32 s40, s40, s41")
    a("s_lshl_b32 s41, s39, 11")
    a("s_add_u32 s41, s41, s40")
    a("v_add_u32 v57, s41, v2")
    a("v_and_b32 v58, 31, v1")
    a("v_lshlrev_b32 v58, 4, v58")
    a("s_add_u32 s40, s40, 3*1024+512")
    a("v_add_u32 v58, s40, v58")
    a("s_waitcnt lgkmcnt(0)")
    a("s_barrier")
    st.stamp()
    R = 64
    for k in range(4):
        a(f"ds_read_b32 v{60+k}, v58 offset:{k*8192}")
    for k in range(4):
        a(f"ds_read_b128 {vr(R+8*k,4)}, v57 offset:{k*8192}")
        a(f"ds_read_b128 {vr(R+8*k+4,4)}, v57 offset:{k*8192+1024}")
    a("s_add_u32 s42, s33, s38")
    a("s_lshl_b32 s42, s42, 4")
    a("s_add_u32 s42, s42, s15")
    a("s_lshl_b32 s42, s42, 1")
    a("s_add_u32 s42, s42, s39")
    a("s_lshl_b32 s42, s42, 10")
    a(f"s_add_u32 s42, s42, {OF}")
    a("s_waitcnt lgkmcnt(8)")
    a("v_add_f32 v60, v60, v61")
    a("v_add_f32 v62, v62, v63")
    a("v_add_f32 v60, v60, v62")
    a("v_rcp_f32 v60, v60")
    a("s_waitcnt lgkmcnt(0)")
    for r in range(8):
        a(f"v_add_f32 v{R+r}, v{R+r}, v{R+8+r}")
        a(f"v_add_f32 v{R+16+r}, v{R+16+r}, v{R+24+r}")
    for r in range(8):
        a(f"v_add_f32 v{R+r}, v{R+r}, v{R+16+r}")
    for r in range(8):
        a(f"v_mul_f32 v{R+r}, v{R+r}, v60")
    for q in range(4):
        a(f"v_cvt_pk_bf16_f32 v{96+q}, v{R+2*q}, v{R+2*q+1}")
    a("s_cmp_eq_u32 s39, 1")
    a("s_cselect_b32 s45, -1, 0")
    a("s_mov_b32 s44, 0")
    a("v_cndmask_b32 v98, v98, 0, s[44:45]")
    a("v_cndmask_b32 v99, v99, 0, s[44:45]")
    a("buffer_store_dwordx4 v[96:99], v2, s[4:7], s42 offen")
    st.finish()
    a.label("k2_end")
    a("s_endpgm")
    a.label("k2_slow")
    M0_, M1_ = 56, 57
    a(f"v_mov_b32 v{M0_}, 0xff7fffff")
    a(f"v_mov_b32 v{M1_}, 0xff7fffff")
    a.label("k2_sloop")
    a(f"buffer_load_dwordx4 {vr(KB_[0],4)}, v2, s[4:7], s18 offen")
    a(f"buffer_load_dwordx4 {vr(KB_[0]+4,4)}, v2, s[4:7], s18 offen offset:1024")
    a(f"buffer_load_dwordx4 {vr(VB_[0],4)}, v2, s[4:7], s19 offen")
    a(f"buffer_load_dwordx4 {vr(VB_[0]+4,4)}, v2, s[4:7], s19 offen offset:1024")
    a("s_waitcnt vmcnt(0)")
    for t, (Q, S_, P_, O_, M_) in enumerate(((Q0, S0, P0, O0, M0_), (Q1, S1, P1, O1, M1_))):
        s = vr(S_, 16); o = vr(O_, 16)
        a(mf(s, vr(KB_[0], 4), vr(Q, 4), "0"))
        a(mf(s, vr(KB_[0]+4, 4), vr(Q+4, 4), s))
        a("s_nop 7\ns_nop 7")
        a(f"v_max3_f32 v58, v{S_}, v{S_+1}, v{S_+2}")
        for r in range(3, 15, 2):
            a(f"v_max3_f32 v58, v58, v{S_+r}, v{S_+r+1}")
        a(f"v_max_f32 v58, v58, v{S_+15}")
        a("v_mov_b32 v59, v58")
        a("s_nop 1")
        a("v_permlane32_swap_b32 v58, v59")
        a("v_max_f32 v58, v58, v59")
        a(f"v_max_f32 v58, v58, v{M_}")
        a(f"v_sub_f32 v59, v{M_}, v58")
        a("v_exp_f32 v59, v59")
        a(f"v_mov_b32 v{M_}, v58")
        for r in range(16):
            a(f"v_mul_f32 v{O_+r}, v{O_+r}, v59")
        for r in range(16):
            a(f"v_sub_f32 v{S_+r}, v{S_+r}, v58")
        for g in range(4):
            expcvt(a, S_, P_, g)
        a("s_nop 1")
        a(mf(o, vr(VB_[0], 4), vr(P_, 4), o))
        a(mf(o, vr(VB_[0]+4, 4), vr(P_+4, 4), o))
    a("s_nop 7\ns_nop 7")
    a("s_add_u32 s18, s18, 2048")
    a("s_add_u32 s19, s19, 2048")
    a("s_sub_u32 s17, s17, 1")
    a("s_cmp_lg_u32 s17, 0")
    a("s_cbranch_scc1 k2_sloop")
    a("s_lshl_b32 s37, s26, 9")
    a(f"s_add_u32 s37, s37, {LDS_MX}")
    a("v_lshlrev_b32 v58, 2, v1")
    a("v_add_u32 v59, s37, v58")
    a(f"ds_write_b32 v59, v{M0_}")
    a(f"ds_write_b32 v59, v{M1_} offset:256")
    a("s_lshl_b32 s37, s14, 11")
    a(f"s_add_u32 s37, s37, {LDS_MX}")
    a("v_add_u32 v59, s37, v58")
    a("s_waitcnt lgkmcnt(0)")
    a("s_barrier")
    for t, (O_, M_) in enumerate(((O0, M0_), (O1, M1_))):
        for k in range(4):
            a(f"ds_read_b32 v{60+k}, v59 offset:{k*512+t*256}")
        a("s_waitcnt lgkmcnt(0)")
        a("v_max3_f32 v60, v60, v61, v62")
        a("v_max_f32 v60, v60, v63")
        a(f"v_sub_f32 v60, v{M_}, v60")
        a("v_exp_f32 v60, v60")
        a("s_nop 0")
        for r in range(16):
            a(f"v_mul_f32 v{O_+r}, v{O_+r}, v60")
    a("s_branch k2_red")
```

```python
from asmlib import *
from common import *
import stamps
from k1 import srd

K3_LDS = 456*128
STAGES_A = [6, 8, 9, 9]
STAGES_B = [6, 8, 7, 7]

def gen_k3(a):
    X0 = 16; ACC = 144; WF = 176
    a.label("k3_kernel")
    a("s_cmp_ge_u32 s2, 256")
    a("s_cbranch_scc1 k3_end")
    st = stamps.St(a, 2, "s19", "s8", "s9")
    st.start()
    a("s_load_dwordx2 s[4:5], s[0:1], 16")
    a("s_load_dwordx2 s[6:7], s[0:1], 48")
    a("s_load_dwordx2 s[8:9], s[0:1], 64")
    a("s_getpc_b64 s[10:11]")
    a("s_add_u32 s10, s10, TG@rel32@lo+4")
    a("s_addc_u32 s11, s11, TG@rel32@hi+12")
    a("s_and_b32 s40, s2, 7")
    a("s_lshr_b32 s41, s2, 3")
    a("s_lshr_b32 s16, s40, 2")
    a("s_and_b32 s17, s40, 3")
    a("v_lshrrev_b32 v4, 6, v0")
    a("v_and_b32 v1, 63, v0")
    a("v_readfirstlane_b32 s19, v4")
    a("v_and_b32 v2, 31, v1")
    a("v_lshrrev_b32 v3, 5, v1")
    a("v_lshrrev_b32 v6, 3, v1")
    a("v_and_b32 v7, 7, v1")
    a("v_bfe_u32 v8, v1, 4, 1")
    a("v_lshlrev_b32 v8, 2, v8")
    a("v_xor_b32 v7, v7, v8")
    a("v_and_b32 v9, 15, v1")
    a("v_lshrrev_b32 v9, 2, v9")
    a("v_and_b32 v10, 3, v1")
    a("v_bfe_u32 v11, v1, 4, 1")
    a("v_lshlrev_b32 v11, 5, v11")
    a("v_lshl_add_u32 v10, v10, 3, v11")
    a("v_bfe_u32 v11, v9, 1, 1")
    a("v_lshlrev_b32 v11, 2, v11")
    a("s_waitcnt lgkmcnt(0)")
    st.stamp()
    srd(a, 28, "s8", "s9", WS_USED)
    srd(a, 32, "s6", "s7", S*896*2)
    n_save = st.n
    a("s_cmp_eq_u32 s16, 1")
    a("s_cbranch_scc1 k3_b3")

    def trbases(gstride, rowpart_code):
        rowpart_code()
        for g in range(2):
            a(f"v_add_u32 v13, {gstride*g}, v10")
            a("v_lshrrev_b32 v5, 4, v13")
            a("v_xor_b32 v5, v5, v11")
            a("v_and_b32 v13, 15, v13")
            a("v_lshl_add_u32 v5, v5, 4, v13")
            a(f"v_add_u32 v{14+g}, v5, v12")

    def mainloop(nks, stages, ndma_per_wave, dma_of_stage, roff, order, extra_first):
        bounds = []; acc = 0
        for n in stages:
            acc += n; bounds.append(acc)
        assert acc == nks
        def stage_of(ks):
            for si, b in enumerate(bounds):
                if ks < b: return si
        def stage_wait(si):
            a(f"s_waitcnt vmcnt({issue_rem[si]})")
            a("s_barrier")
            if si in (0, 2, 3): st.stamp()
        def trread(ks, g, buf):
            o1, o2 = roff(ks)
            a(f"ds_read_b64_tr_b16 {vr(buf,2)}, v{14+g} offset:{o1}")
            a(f"ds_read_b64_tr_b16 {vr(buf+2,2)}, v{14+g} offset:{o2}")
        issue_rem = dma_of_stage
        seq = [(ks, g) for ks in range(nks) for g in range(2)]
        DEPTH = 4
        def buf(idx): return WF + 4*(idx % DEPTH)
        cur_stage = 0
        stage_wait(0)
        issued = 0
        def try_issue(upto):
            nonlocal issued, cur_stage
            while issued < min(upto, len(seq)):
                ks, g = seq[issued]
                if stage_of(ks) != cur_stage:
                    cur_stage = stage_of(ks)
                    stage_wait(cur_stage)
                trread(ks, g, buf(issued))
                issued += 1
        try_issue(DEPTH - 1)
        for idx, (ks, g) in enumerate(seq):
            try_issue(idx + DEPTH - 0 if False else idx + DEPTH - 1 + 0)
            out = issued - idx - 1
            a(f"s_waitcnt lgkmcnt({2*out})")
            x = vr(X0+4*ks, 4); w = vr(buf(idx), 4); d = vr(ACC+16*g, 16)
            c = "0" if ks == 0 else d
            if order == "WX":
                a(f"v_mfma_f32_32x32x16_bf16 {d}, {w}, {x}, {c}")
            else:
                a(f"v_mfma_f32_32x32x16_bf16 {d}, {x}, {w}, {c}")
            try_issue(idx + DEPTH)
        st.stamp()
        a("s_nop 7")
        a("s_nop 3")

    def epilogue():
        a("v_mov_b32 v6, 0x40000000")
        a("v_cmp_eq_u32 vcc, 1, v3")
        a("s_nop 1")
        a("v_cndmask_b32 v5, v4, v6, vcc")
        for g in range(2):
            d = ACC + 16*g
            for q in range(8):
                a(f"v_cvt_pk_bf16_f32 v{X0+8*g+q}, v{d+2*q}, v{d+2*q+1}")
            for q in range(4):
                va = "v5" if q == 3 else "v4"
                a(f"buffer_store_dwordx2 {vr(X0+8*g+2*q,2)}, {va}, s[32:35], s45 offen offset:{16*q}")
            if g == 0:
                a("s_add_u32 s45, s45, s44")

    a("s_lshl_b32 s20, s17, 2")
    a("s_and_b32 s21, s41, 3")
    a("s_add_u32 s20, s20, s21")
    a("s_lshr_b32 s21, s41, 2")
    a("s_mul_i32 s22, s21, 112")
    a("s_add_u32 s24, s4, s22")
    a("s_addc_u32 s25, s5, 0")
    a(f"s_sub_u32 s23, {448*896}, s22")
    srd(a, 24, "s24", "s25", "s23")
    a("s_lshl_b32 s22, s20, 2")
    a("s_add_u32 s22, s22, s19")
    a("s_lshl_b32 s46, s22, 15")
    a(f"s_add_u32 s46, s46, {OF}")
    a("v_lshlrev_b32 v4, 4, v1")
    a("s_movk_i32 s47, 896")
    a("v_mul_lo_u32 v5, v6, s47")
    a("v_lshl_add_u32 v5, v7, 4, v5")
    a("v_cmp_gt_u32 vcc, 7, v7")
    a("v_mov_b32 v8, 0x40000000")
    a("s_nop 0")
    a("v_cndmask_b32 v5, v8, v5, vcc")
    a("s_mul_i32 s53, s19, 8*896")
    a("s_lshl_b32 s55, s19, 10")
    a("s_mov_b32 m0, s55")
    a("s_nop 0")
    order = []
    xi = 0; ti = 0
    while xi < 32 or ti < 14:
        if ti < 14 and (ti * 32 <= xi * 14 or xi >= 32):
            order.append(("d", ti)); ti += 1
        else:
            order.append(("x", xi)); xi += 1
    for kind, n in order:
        if kind == "x":
            if n % 4 == 0 and n > 0:
                a("s_add_u32 s46, s46, 4096")
            a(f"buffer_load_dwordx4 {vr(X0+4*n,4)}, v4, s[28:31], s46 offen offset:{(n%4)*1024}")
        else:
            a("buffer_load_dwordx4 v5, s[24:27], s53 offen lds")
            if n < 13:
                a(f"s_add_u32 s53, s53, {32*896}")
                a("s_add_u32 m0, m0, 4096")
    a("v_mov_b32 v8, 0")
    a("v_lshlrev_b32 v12, 2, v0")
    a(f"ds_write_b32 v12, v8 offset:{448*128}")
    bounds = []; acc = 0
    for n in STAGES_A:
        acc += n; bounds.append(acc)
    rem = []
    for b in bounds:
        klast = b - 1
        h, m = klast // 2, klast % 2
        rows = min(448, 28*h + 16*m + 16)
        tneed = (rows + 31) // 32
        pos = max(order.index(("x", klast)), order.index(("d", tneed-1)))
        rem.append(len(order) - 1 - pos)
    def rp_a():
        a("v_lshl_add_u32 v12, v3, 2, v9")
        a("v_lshlrev_b32 v12, 7, v12")
    trbases(56, rp_a)
    a("s_waitcnt lgkmcnt(0)")
    mainloop(32, STAGES_A, 14, rem, lambda k: ((28*(k//2)+16*(k % 2))*128, (28*(k//2)+16*(k % 2)+8)*128), "WX", 0)
    a("s_lshl_b32 s22, s20, 7")
    a("s_lshl_b32 s23, s19, 5")
    a("s_add_u32 s22, s22, s23")
    a("s_mul_i32 s45, s22, 1792")
    a("s_mul_i32 s23, s21, 112")
    a("s_add_u32 s45, s45, s23")
    a("s_movk_i32 s44, 56")
    a("s_movk_i32 s47, 1792")
    a("v_mul_lo_u32 v4, v2, s47")
    a("v_lshl_add_u32 v4, v3, 3, v4")
    epilogue()
    st.finish()
    a("s_endpgm")
    a.label("k3_b3")
    st.n = n_save
    a("s_lshl_b32 s20, s17, 3")
    a("s_and_b32 s21, s41, 7")
    a("s_add_u32 s20, s20, s21")
    a("s_lshr_b32 s21, s41, 3")
    a("s_lshl_b32 s22, s20, 7")
    a(f"s_add_u32 s22, s22, {ZT}")
    a("s_add_u32 s24, s8, s22")
    a("s_addc_u32 s25, s9, 0")
    a(f"s_sub_u32 s23, {WS_USED}, s22")
    srd(a, 24, "s24", "s25", "s23")
    srd(a, 36, "s10", "s11", 16*28*1024)
    a("s_lshl_b32 s22, s21, 2")
    a("s_add_u32 s22, s22, s19")
    a("s_mul_i32 s46, s22, 28*1024")
    a("v_lshlrev_b32 v4, 4, v1")
    a("v_lshlrev_b32 v5, 12, v6")
    a("v_lshl_add_u32 v5, v7, 4, v5")
    a("s_lshl_b32 s53, s19, 15")
    a("s_lshl_b32 s55, s19, 10")
    a("s_mov_b32 m0, s55")
    a("s_nop 0")
    order = []
    xi = 0; ti = 0
    while xi < 28 or ti < 14:
        if ti < 14 and (ti * 2 <= xi or xi >= 28):
            order.append(("d", ti)); ti += 1
        else:
            order.append(("x", xi)); xi += 1
    for kind, n in order:
        if kind == "x":
            if n % 4 == 0 and n > 0:
                a("s_add_u32 s46, s46, 4096")
            a(f"buffer_load_dwordx4 {vr(X0+4*n,4)}, v4, s[36:39], s46 offen offset:{(n%4)*1024}")
        else:
            a("buffer_load_dwordx4 v5, s[24:27], s53 offen lds")
            if n < 13:
                a(f"s_add_u32 s53, s53, {32*4096}")
                a("s_add_u32 m0, m0, 4096")
    bounds = []; acc = 0
    for n in STAGES_B:
        acc += n; bounds.append(acc)
    rem = []
    for b in bounds:
        klast = b - 1
        tneed = (16*b + 31) // 32
        pos = max(order.index(("x", klast)), order.index(("d", tneed-1)))
        rem.append(len(order) - 1 - pos)
    def rp_b():
        a("v_lshl_add_u32 v12, v3, 3, v9")
        a("v_lshlrev_b32 v12, 7, v12")
    trbases(64, rp_b)
    mainloop(28, STAGES_B, 14, rem, lambda k: (16*k*128, (16*k+4)*128), "XW", 0)
    a("s_lshl_b32 s22, s20, 6")
    a("s_mul_i32 s45, s22, 1792")
    a("s_mul_i32 s23, s21, 224")
    a("s_add_u32 s45, s45, s23")
    a("s_mul_i32 s23, s19, 56")
    a("s_add_u32 s45, s45, s23")
    a("s_add_u32 s45, s45, 896")
    a("s_mov_b32 s44, 32*1792")
    a("s_movk_i32 s47, 1792")
    a("v_mul_lo_u32 v4, v2, s47")
    a("v_lshl_add_u32 v4, v3, 3, v4")
    epilogue()
    st.finish()
    a.label("k3_end")
    a("s_endpgm")
```

```python
DBGA = 0x2000000
ENABLED = False
class St:
    def __init__(self, a, kidx, wave_sreg, srd_base_lo, srd_base_hi):
        self.a = a; self.k = kidx; self.n = 0; self.w = wave_sreg; self.lo = srd_base_lo; self.hi = srd_base_hi
    def start(self):
        if not ENABLED: return
        self.a("s_memrealtime s[74:75]")
        for i in range(78, 100): self.a(f"s_mov_b32 s{i}, 0")
        self.stamp()
    def stamp(self):
        if not ENABLED: return
        assert self.n < 11
        self.a(f"s_memtime s[{78+2*self.n}:{79+2*self.n}]")
        self.n += 1
    def finish(self, vtmp=(246, 247)):
        if not ENABLED: return
        a = self.a
        a("s_waitcnt vmcnt(0)")
        self.stamp()
        a("s_memrealtime s[76:77]")
        a("s_waitcnt lgkmcnt(0)")
        a(f"s_add_u32 s64, {self.lo}, {DBGA}")
        a(f"s_addc_u32 s65, {self.hi}, 0")
        a("s_and_b32 s65, s65, 0xffff")
        a("s_mov_b32 s66, 0x1000000")
        a("s_mov_b32 s67, 0x20000")
        v0, v1 = vtmp
        a(f"s_add_u32 s70, s2, {self.k*256}")
        a("s_lshl_b32 s70, s70, 3")
        a(f"s_add_u32 s70, s70, {self.w}")
        a("s_lshl_b32 s70, s70, 7")
        a(f"v_mov_b32 v{v0}, 0")
        for i in range(self.n):
            a(f"v_writelane_b32 v{v0}, s{78+2*i}, {i}")
        a(f"v_writelane_b32 v{v0}, s74, 12")
        a(f"v_writelane_b32 v{v0}, s76, 13")
        a(f"s_getreg_b32 s71, hwreg(HW_REG_HW_ID)")
        a(f"v_writelane_b32 v{v0}, s71, 14")
        a(f"s_getreg_b32 s71, hwreg(HW_REG_XCC_ID)")
        a(f"v_writelane_b32 v{v0}, s71, 15")
        a(f"v_mbcnt_lo_u32_b32 v{v1}, -1, 0")
        a(f"v_mbcnt_hi_u32_b32 v{v1}, -1, v{v1}")
        a(f"v_lshlrev_b32 v{v1}, 2, v{v1}")
        a("s_mov_b64 exec, 0xffff")
        a(f"buffer_store_dword v{v0}, v{v1}, s[64:67], s70 offen")
        a("s_waitcnt vmcnt(0)")
```

```python
from common import *
def gen_tables():
    L = []
    L.append('.section .rodata,"a"')
    L.append(".p2align 8")
    for m in range(448):
        L.append(f".set C{m}, {bf16bits(np.cos(2*np.pi*m/448))}")
    L.append(""".altmacro
.macro EMIT2 a, b
.long C\\a | (C\\b << 16)
.endm
TF:
.set d, 0
.rept 448
 EMIT2 0, %((224*d) % 448)
 .set c, 1
 .rept 223
  EMIT2 %((c*d) % 448), %((c*d+112) % 448)
  .set c, c+1
 .endr
 .set d, d+1
.endr
.p2align 8
TG:
.set grp, 0
.rept 16
 .set ks, 0
 .rept 28
  .set l, 0
  .rept 64
   .set d, 28*grp + (l % 32)
   .set j2, 8*ks + 4*(l / 32)
   .if (l % 32) >= 28
    .long 0, 0, 0, 0
   .else
    .if j2 == 0
     .long 0x3f00 | ((0x3f00 | ((d % 2) << 15)) << 16)
    .else
     EMIT2 %((j2*d) % 448), %((j2*d+112) % 448)
    .endif
    EMIT2 %(((j2+1)*d) % 448), %(((j2+1)*d+112) % 448)
    EMIT2 %(((j2+2)*d) % 448), %(((j2+2)*d+112) % 448)
    EMIT2 %(((j2+3)*d) % 448), %(((j2+3)*d+112) % 448)
   .endif
   .set l, l+1
  .endr
  .set ks, ks+1
 .endr
 .set grp, grp+1
.endr
.noaltmacro""")
    return "\n".join(L) + "\n"

def tf_numpy():
    d = np.arange(448)
    F = np.zeros((448, 448))
    F[:, 0] = 1; F[:, 1] = np.cos(2*np.pi*224*d/448)
    for c in range(1, 224):
        F[:, 2*c] = np.cos(2*np.pi*c*d/448); F[:, 2*c+1] = -np.sin(2*np.pi*c*d/448)
    return F

def frag_const(M, lane_base, kbase):
    out = np.zeros((64, 8), np.uint16)
    for l in range(64):
        i = l % 32; hf = l // 32
        for j in range(8):
            out[l, j] = bf16bits(M[lane_base + i][kbase + 8*(j//4) + 4*hf + (j % 4)])
    return out

def tb2_numpy():
    parts = []
    n = np.arange(32)
    a32 = -2*np.pi*np.outer(n, n)/32
    Fr, Fi = np.cos(a32), np.sin(a32)
    for M in (Fr, Fi, -Fi):
        for ks in range(2):
            parts.append(frag_const(M, 0, 16*ks).tobytes())
    n = np.arange(64)
    a64 = -2*np.pi*np.outer(n, n)/64
    Fr, Fi = np.cos(a64), np.sin(a64)
    for lt in range(2):
        for kap in range(4):
            for M in (Fr, Fi, -Fi):
                parts.append(frag_const(M, 32*lt, 32*(kap//2) + 16*(kap % 2)).tobytes())
    tw = np.zeros((2, 4, 2, 64, 4), np.float32)
    for mt in range(2):
        for q in range(4):
            for l in range(64):
                i = l % 32; hf = l // 32
                for b in range(4):
                    s2 = 32*mt + 8*q + 4*hf + b
                    th = -2*np.pi*s2*i/2048
                    tw[mt, q, 0, l, b] = np.cos(th); tw[mt, q, 1, l, b] = np.sin(th)
    parts.append(tw.tobytes())
    tw = np.zeros((2, 4, 2, 64, 4), np.float32)
    for nt in range(2):
        for q in range(4):
            for l in range(64):
                i = l % 32; hf = l // 32
                for b in range(4):
                    k1 = 8*q + 4*hf + b
                    th = 2*np.pi*(32*nt + i)*k1/2048
                    sc = 2.0/(2048*448); tw[nt, q, 0, l, b] = np.cos(th)*sc; tw[nt, q, 1, l, b] = np.sin(th)*sc
    parts.append(tw.tobytes())
    return b"".join(parts)

def gen_tb2():
    data = np.frombuffer(tb2_numpy(), dtype=np.uint64)
    L = [".p2align 8", "TB2:"]
    for k in range(0, len(data), 8):
        L.append(".quad " + ",".join("0x%x" % v for v in data[k:k+8]))
    return "\n".join(L) + "\n"
```

```python
import sys
from asmlib import *
from common import *
import k1, k2, k3, tables
def stamps_on():
    import stamps
    return stamps.ENABLED
NAME = "concat_heads__softmax_full_mha__spectral_gfnet__prompt"
def build(which=("k1","k2","k3"), order=None):
    hdr = open("cdna_kernels/%s.s.ref" % NAME).read().split("\n")
    head = [l for l in hdr[:12] if l.startswith(";") and "@launch" not in l and "Override" not in l and "grid=ceil" not in l]
    out = head[:]
    launches = []
    if "k1" in which: launches.append("; @launch kernel=k1_kernel grid=(256,1,1) block=(512,1,1) lds=%d" % k1.K1_LDS)
    if "k2" in which: launches.append("; @launch kernel=k2_kernel grid=(256,1,1) block=(512,1,1) lds=%d" % k2.K2_LDS)
    if "k3" in which: launches.append("; @launch kernel=k3_kernel grid=(256,1,1) block=(256,1,1) lds=%d" % k3.K3_LDS)
    if order:
        m = {"k1": launches[0], "k2": launches[1], "k3": launches[2]}
        launches = [m[x] for x in order]
    out += launches
    out.append('.amdgcn_target "amdgcn-amd-amdhsa--gfx950"')
    errs = []
    descs = []
    body = []
    for nm, fn, vg in (("k1", k1.gen_k1, 256 if stamps_on() else 240), ("k2", k2.gen_k2, 256 if stamps_on() else 248), ("k3", k3.gen_k3, 256 if stamps_on() else 192)):
        if nm not in which: continue
        a = Asm()
        fn(a)
        errs += check(a.L, nm)
        for lp in getattr(a, "loops", []):
            errs += check(lp + lp, nm + "-loop")
        body.append(".text\n.globl %s_kernel\n.p2align 8\n.type %s_kernel,@function\n" % (nm, nm) + a.text())
        descs.append(k1.desc(nm + "_kernel", vg))
    txt = "\n".join(out) + "\n" + "\n".join(body) + "\n" + "\n".join(descs) + tables.gen_tables() + tables.gen_tb2()
    return txt, errs
if __name__ == "__main__":
    import stamps
    if len(sys.argv) > 2 and sys.argv[2] == "stamp": stamps.ENABLED = True
    order = None
    for x in sys.argv[3:]:
        if x.startswith("order="): order = x[6:].split(",")
        if x == "nopf": k1.PF = False
        if x.startswith("pre="): k1.PRE = int(x[4:])
        if x == "nob2":
            k2.WITH_B2 = False; k2.NB0 = [16]*4; k2.NB1 = [16]*4
    txt, errs = build(order=order)
    for e in errs: print("HAZARD", e)
    open(sys.argv[1] if len(sys.argv) > 1 else "out.s", "w").write(txt)
    print("written", len(txt))
```

```python
from asmlib import *
from common import *
import stamps

def srd(a, s, lo, hi, size):
    a(f"s_mov_b32 s{s}, {lo}")
    a(f"s_and_b32 s{s+1}, {hi}, 0xffff")
    a(f"s_mov_b32 s{s+2}, {size}")
    a(f"s_mov_b32 s{s+3}, 0x20000")

K1_LDS = 163840
PRE = 2
PF = True
OOB = "0x40000000"

def gen_k1(a):
    ACC = 128; XA = 16; WA = 32; P = 48
    XB = 64
    WB = 76
    WTR = 96
    VXE, VXO, VW = 4, 5, 6
    a.label("k1_kernel")
    a("s_cmp_ge_u32 s2, 256")
    a("s_cbranch_scc1 k1_end")
    st = stamps.St(a, 0, "s41", "s10", "s11")
    st.start()
    a("s_load_dwordx4 s[4:7], s[0:1], 0")
    a("s_load_dwordx2 s[8:9], s[0:1], 24")
    a("s_load_dwordx4 s[12:15], s[0:1], 32")
    a("s_load_dwordx2 s[10:11], s[0:1], 64")
    a("s_getpc_b64 s[42:43]")
    a("s_add_u32 s42, s42, TF@rel32@lo+4")
    a("s_addc_u32 s43, s43, TF@rel32@hi+12")
    a("s_and_b32 s40, s2, 7")
    a("s_lshr_b32 s41, s2, 3")
    a("s_lshr_b32 s16, s40, 1")
    a("s_and_b32 s17, s40, 1")
    a("s_lshl_b32 s17, s17, 3")
    a("s_and_b32 s44, s41, 7")
    a("s_or_b32 s17, s17, s44")
    a("s_lshr_b32 s18, s41, 3")
    a("v_lshrrev_b32 v7, 6, v0")
    a("v_and_b32 v1, 63, v0")
    a("v_readfirstlane_b32 s19, v7")
    a("v_and_b32 v2, 31, v1")
    a("v_lshrrev_b32 v3, 5, v1")
    a("s_nop 0")
    a("s_mov_b32 s41, s19")
    a("s_and_b32 s19, s19, 3")
    a("s_cmp_lt_u32 s41, 4")
    a("s_cbranch_scc1 k1_cons")
    a("s_cmp_eq_u32 s16, 3")
    a("s_mov_b32 s44, 896")
    a("s_cselect_b32 s44, 57344, s44")
    a("s_mov_b32 s47, 2688")
    a("s_cselect_b32 s47, 896, s47")
    a("s_mov_b32 s45, 8*896")
    a("s_cselect_b32 s45, 512*896, s45")
    a("s_lshl_b32 s48, s17, 7")
    a("s_lshl_b32 s49, s19, 5")
    a("s_add_u32 s48, s48, s49")
    a("s_lshl_b32 s49, s17, 2")
    a("s_add_u32 s49, s49, s19")
    a("s_cmp_eq_u32 s16, 3")
    a("s_cselect_b32 s48, s49, s48")
    a("s_mul_i32 s56, s48, 896")
    a("s_add_u32 s57, s56, s45")
    a("s_add_u32 s58, s57, s45")
    a("s_add_u32 s59, s58, s45")
    a("s_lshl_b32 s60, s19, 4")
    a("s_mul_i32 s60, s60, s47")
    a("s_lshl_b32 s46, s47, 2")
    a("s_add_u32 s61, s60, s46")
    a("s_add_u32 s62, s61, s46")
    a("s_add_u32 s63, s62, s46")
    a("s_lshl_b32 s46, s47, 6")
    a("s_lshl_b32 s55, s19, 12")
    a("v_lshrrev_b32 v7, 3, v1")
    a("v_and_b32 v8, 7, v1")
    a("v_lshrrev_b32 v9, 1, v7")
    a("v_xor_b32 v8, v8, v9")
    a("v_mul_lo_u32 v7, v7, s44")
    a(f"v_lshl_add_u32 v{VXE}, v8, 4, v7")
    a("v_xor_b32 v8, 4, v8")
    a(f"v_lshl_add_u32 v{VXO}, v8, 4, v7")
    a("v_lshrrev_b32 v7, 4, v1")
    a("v_and_b32 v8, 15, v1")
    a("v_lshlrev_b32 v9, 2, v7")
    a("v_xor_b32 v8, v8, v9")
    a("v_mul_lo_u32 v7, v7, s47")
    a(f"v_lshl_add_u32 v{VW}, v8, 4, v7")
    a("v_cmp_gt_u32 vcc, 14, v8")
    a(f"v_mov_b32 v9, {OOB}")
    a("s_and_b32 s64, s2, 7")
    a(f"v_cndmask_b32 v{VW}, v9, v{VW}, vcc")
    a("s_lshr_b32 s65, s2, 3")
    a("s_lshl_b32 s64, s64, 1")
    a("s_and_b32 s66, s65, 1")
    a("s_or_b32 s64, s64, s66")
    a("s_bfe_u32 s66, s65, 0x20001")
    a("s_lshr_b32 s65, s65, 3")
    a("s_lshl_b32 s67, s64, 7")
    a("s_lshl_b32 s50, s66, 3")
    a("s_add_u32 s67, s67, s50")
    a("s_mul_i32 s50, s67, 450")
    a("s_mul_i32 s65, s65, 58")
    a("s_min_u32 s65, s65, 167")
    a("s_lshl_b32 s67, s65, 1")
    a("s_add_u32 s50, s50, s67")
    a("s_add_u32 s51, s50, 14400")
    a("s_add_u32 s52, s50, 28800")
    a("s_add_u32 s53, s50, 43200")
    a("v_and_b32 v0, 255, v0")
    a("v_lshrrev_b32 v12, 3, v0")
    a("v_and_b32 v13, 7, v0")
    a("v_mul_u32_u24 v10, 450, v13")
    a("v_lshl_add_u32 v10, v12, 2, v10")
    a("v_cmp_gt_u32 vcc, 29, v12")
    a("v_lshlrev_b32 v11, 14, v12")
    a("v_lshl_add_u32 v11, v13, 4, v11")
    a("v_cndmask_b32 v10, v9, v10, vcc")
    a("v_cndmask_b32 v11, v9, v11, vcc")
    a("s_lshl_b32 s67, s65, 13")
    a("s_lshl_b32 s64, s64, 9")
    a("v_add_u32 v14, 8192, v11")
    a("s_add_u32 s64, s64, s67")
    a("s_lshl_b32 s66, s66, 7")
    a("s_add_u32 s64, s64, s66")
    a(f"s_add_u32 s64, s64, {WT}")
    a("s_waitcnt lgkmcnt(0)")
    st.stamp()
    a("s_cmp_eq_u32 s16, 3")
    a("s_cselect_b32 s48, s8, s4")
    a("s_cselect_b32 s49, s9, s5")
    srd(a, 20, "s48", "s49", S*D*2)
    a("s_mul_i32 s66, s16, 896")
    a("s_mul_i32 s67, s18, 224")
    a("s_add_u32 s66, s66, s67")
    a("s_cmp_eq_u32 s16, 3")
    a("s_cselect_b32 s66, s67, s66")
    a("s_cselect_b32 s48, s42, s6")
    a("s_cselect_b32 s49, s43, s7")
    a(f"s_mov_b32 s67, {448*2688}")
    a(f"s_cselect_b32 s67, {448*896}, s67")
    a("s_add_u32 s48, s48, s66")
    a("s_addc_u32 s49, s49, 0")
    a("s_sub_u32 s67, s67, s66")
    srd(a, 24, "s48", "s49", "s67")

    def dma_chunk(c):
        so = (c % 5) * 32768
        for u in range(4):
            a(f"s_add_u32 m0, s55, {so + u*1024}")
            a("s_nop 0" if u == 0 else f"s_add_u32 s{56+u-1}, s{56+u-1}, 128")
            a(f"buffer_load_dwordx4 v{VXE if u % 2 == 0 else VXO}, s[20:23], s{56+u} offen lds")
        for u in range(4):
            a(f"s_add_u32 m0, s55, {so + 16384 + u*1024}")
            a("s_add_u32 s59, s59, 128" if u == 0 else f"s_add_u32 s{60+u-1}, s{60+u-1}, s46")
            a(f"buffer_load_dwordx4 v{VW}, s[24:27], s{60+u} offen lds")
        a("s_add_u32 s63, s63, s46")
    issued_wt = [False]
    for c in range(PRE): dma_chunk(c)
    st.stamp()
    srd(a, 32, "s12", "s13", S*225*2)
    srd(a, 36, "s14", "s15", S*225*2)
    srd(a, 28, "s10", "s11", WS_USED)
    a("s_mov_b32 s70, 0x05040100")
    a("s_mov_b32 s71, 0x07060302")
    def wt_loads():
        so = ["s50", "s51", "s52", "s53"]
        for part in range(2):
            for b in range(4):
                a(f"buffer_load_dword v{WTR + part*4 + b}, v10, s[{32+4*part}:{35+4*part}], {so[b]} offen")
    def wt_out():
        for b in range(4):
            a(f"v_perm_b32 v{WTR+8+b}, v{WTR+4+b}, v{WTR+b}, s70")
            a(f"v_perm_b32 v{WTR+12+b}, v{WTR+4+b}, v{WTR+b}, s71")
        a(f"buffer_store_dwordx4 {vr(WTR+8,4)}, v11, s[28:31], s64 offen")
        a(f"buffer_store_dwordx4 {vr(WTR+12,4)}, v14, s[28:31], s64 offen")
    issued = PRE
    for c in range(7):
        wtl = 8 if (c > 7 - PRE - 1 + 0 and issued_wt[0]) else 0
        younger = (issued - 1 - c) * 8 + (8 if issued_wt[0] else 0)
        a(f"s_waitcnt vmcnt({younger})")
        a("s_barrier")
        if c in (0, 3): st.stamp()
        if issued < 7 and issued - 5 <= c - 2 + 0 + 0 or (issued < 5):
            dma_chunk(issued); issued += 1
        elif issued < 7:
            pass
        if issued == 7 and not issued_wt[0]:
            wt_loads(); issued_wt[0] = True
    assert issued == 7
    a("s_waitcnt vmcnt(0)")
    wt_out()
    st.finish()
    a("s_endpgm")
    a.label("k1_cons")
    st.n = 1
    if PF:
        a("s_load_dwordx2 s[44:45], s[0:1], 16")
        a("s_getpc_b64 s[46:47]")
        a("s_add_u32 s46, s46, TG@rel32@lo+4")
        a("s_addc_u32 s47, s47, TG@rel32@hi+12")
        a("s_getpc_b64 s[48:49]")
        a("s_add_u32 s48, s48, TB2@rel32@lo+4")
        a("s_addc_u32 s49, s49, TB2@rel32@hi+12")
        a("s_lshl_b32 s50, s2, 12")
        a("s_lshl_b32 s51, s19, 10")
        a("s_add_u32 s50, s50, s51")
        a("v_lshlrev_b32 v4, 4, v1")
    a("s_waitcnt lgkmcnt(0)")
    st.stamp()
    if PF:
        a(f"s_mov_b32 s52, {16*28*1024}")
        a("s_cmp_lt_u32 s2, 112")
        a("s_cbranch_scc1 k1_pf")
        a("s_mov_b32 s46, s44")
        a("s_mov_b32 s47, s45")
        a(f"s_sub_u32 s50, s50, {112*4096}")
        a(f"s_mov_b32 s52, {448*896}")
        a("s_cmp_lt_u32 s2, 210")
        a("s_cbranch_scc1 k1_pf")
        a("s_mov_b32 s46, s48")
        a("s_mov_b32 s47, s49")
        a(f"s_sub_u32 s50, s50, {98*4096}")
        a("s_mov_b32 s52, 63488")
        a.label("k1_pf")
        srd(a, 20, "s46", "s47", "s52")
        a(f"buffer_load_dwordx4 {vr(196,4)}, v4, s[20:23], s50 offen")
    srd(a, 28, "s10", "s11", WS_USED)
    a("s_lshr_b32 s68, s19, 1")
    a("s_and_b32 s69, s19, 1")
    a("v_lshrrev_b32 v7, 1, v2")
    a("v_and_b32 v7, 7, v7")
    a("s_lshl_b32 s70, s68, 13")
    a("v_lshlrev_b32 v8, 7, v2")
    a("v_add_u32 v8, s70, v8")
    for k in range(4):
        a(f"v_add_u32 v9, {2*k}, v3")
        a("v_xor_b32 v9, v9, v7")
        a(f"v_lshl_add_u32 v{XB+k}, v9, 4, v8")
        a(f"v_add_u32 v{XB+4+k}, 0x10000, v{XB+k}")
        a(f"v_add_u32 v{XB+8+k}, 0x20000, v{XB+k}")
    a("v_and_b32 v7, 15, v1")
    a("v_lshrrev_b32 v7, 2, v7")
    a("v_and_b32 v8, 3, v1")
    a("v_bfe_u32 v9, v1, 4, 1")
    a("v_lshlrev_b32 v9, 5, v9")
    a("v_lshl_add_u32 v8, v8, 3, v9")
    a("s_mul_i32 s70, s69, 112")
    a("v_add_u32 v8, s70, v8")
    a("v_lshl_add_u32 v9, v3, 3, v7")
    a("v_lshlrev_b32 v9, 8, v9")
    a("v_lshlrev_b32 v7, 2, v7")
    for g in range(2):
        a(f"v_add_u32 v12, {56*g}, v8")
        a("v_lshrrev_b32 v13, 4, v12")
        a("v_xor_b32 v13, v13, v7")
        a("v_and_b32 v12, 15, v12")
        a("v_lshl_add_u32 v13, v13, 4, v12")
        a(f"v_add_u32 v{WB+g}, v13, v9")
        a(f"v_add_u32 v{WB+2+g}, 0x10000, v{WB+g}")
        a(f"v_add_u32 v{WB+4+g}, 0x20000, v{WB+g}")
    for r in range(64):
        a(f"v_mov_b32 v{ACC+r}, 0")

    def reads(t):
        c, k = t // 4, t % 4
        slot = c % 5
        st_ = slot >> 1; so = (slot & 1) * 32768
        b = t % 2
        for tbi in range(2):
            a(f"ds_read_b128 {vr(XA+8*b+4*tbi,4)}, v{XB+4*st_+k} offset:{so+tbi*4096}")
        for g in range(2):
            o = so + 16384 + k*4096
            a(f"ds_read_b64_tr_b16 {vr(WA+8*b+4*g,2)}, v{WB+2*st_+g} offset:{o}")
            a(f"ds_read_b64_tr_b16 {vr(WA+8*b+4*g+2,2)}, v{WB+2*st_+g} offset:{o+1024}")

    def chunk_wait(c):
        a("s_barrier")
        if c in (0, 1, 2, 3, 4, 6): st.stamp()

    def mainloop(order):
        chunk_wait(0)
        reads(0)
        for t in range(28):
            if t + 1 < 28:
                if (t + 1) % 4 == 0:
                    chunk_wait((t + 1) // 4)
                reads(t + 1)
                a("s_waitcnt lgkmcnt(6)")
            else:
                a("s_waitcnt lgkmcnt(0)")
            b = t % 2
            for tbi in range(2):
                for g in range(2):
                    x = vr(XA+8*b+4*tbi, 4); w = vr(WA+8*b+4*g, 4); d = vr(ACC+16*(2*tbi+g), 16)
                    if order == "WX":
                        a(f"v_mfma_f32_32x32x16_bf16 {d}, {w}, {x}, {d}")
                    else:
                        a(f"v_mfma_f32_32x32x16_bf16 {d}, {x}, {w}, {d}")
        st.stamp()

    a("s_lshl_b32 s71, s17, 2")
    a("s_lshl_b32 s72, s68, 1")
    a("s_add_u32 s71, s71, s72")
    a("s_lshl_b32 s72, s18, 2")
    a("s_lshl_b32 s73, s69, 1")
    a("s_add_u32 s72, s72, s73")
    n_save = st.n
    a("s_cmp_ge_u32 s16, 2")
    a("s_cbranch_scc1 k1_vb")
    mainloop("WX")
    a("s_mov_b32 s66, 0")
    a("s_mov_b32 s67, -1")
    a(f"s_mov_b32 s68, {f2u(CQ):#x}")
    a("s_cmp_eq_u32 s16, 0")
    a("s_cselect_b32 s68, s68, 1.0")
    a("s_mov_b32 s69, s68")
    a("s_cmp_eq_u32 s16, 1")
    a("s_cselect_b64 s[44:45], s[66:67], 0")
    a("s_lshl_b32 s70, s72, 6")
    a("s_add_u32 s70, s70, s71")
    a("s_lshl_b32 s70, s70, 11")
    a("s_lshl_b32 s73, s16, 21")
    a("s_add_u32 s70, s70, s73")
    a("v_lshlrev_b32 v4, 4, v1")
    a("v_mov_b32 v5, 1.0")
    a("s_nop 2")
    for tbi in range(2):
        for g in range(2):
            ti = 2*tbi + g
            d = ACC + 16*ti
            for r in range(0, 16, 2):
                a(f"v_pk_mul_f32 {vr(d+r,2)}, {vr(d+r,2)}, s[68:69]")
            for r in range(12, 16):
                a(f"v_cndmask_b32 v{d+r}, v{d+r}, 0, s[66:67]")
            n = 100 + 2*ti + 12
            a(f"v_pk_mul_f32 {vr(n,2)}, {vr(d,2)}, {vr(d,2)}")
            for r in range(2, 16, 2):
                a(f"v_pk_fma_f32 {vr(n,2)}, {vr(d+r,2)}, {vr(d+r,2)}, {vr(n,2)}")
            a(f"v_cndmask_b32 v{d+12}, v{d+12}, v5, s[44:45]")
            a(f"v_add_f32 v{n}, v{n}, v{n+1}")
            for q in range(8):
                a(f"v_cvt_pk_bf16_f32 v{P+8*ti+q}, v{d+2*q}, v{d+2*q+1}")
            off = g*131072 + tbi*2048
            a(f"s_add_u32 s73, s70, {off}")
            a(f"buffer_store_dwordx4 {vr(P+8*ti,4)}, v4, s[28:31], s73 offen")
            a(f"buffer_store_dwordx4 {vr(P+8*ti+4,4)}, v4, s[28:31], s73 offen offset:1024")
    N0 = 112
    for ti in range(4):
        a(f"v_mov_b32 v{N0+2*ti+1}, v{N0+2*ti}")
    a("s_nop 0")
    for ti in range(4):
        a(f"v_permlane32_swap_b32 v{N0+2*ti}, v{N0+2*ti+1}")
    for ti in range(4):
        a(f"v_add_f32 v{N0+2*ti}, v{N0+2*ti}, v{N0+2*ti+1}")
    for sh in (1, 2, 4, 8):
        for ti in range(4):
            a(f"v_max_f32_dpp v{N0+2*ti}, v{N0+2*ti}, v{N0+2*ti} row_shr:{sh} row_mask:0xf bank_mask:0xf")
    for ti in range(4):
        a(f"v_readlane_b32 s{56+2*ti}, v{N0+2*ti}, 15")
        a(f"v_readlane_b32 s{57+2*ti}, v{N0+2*ti}, 31")
    a("s_nop 1")
    for ti in range(4):
        a(f"s_max_u32 s{56+2*ti}, s{56+2*ti}, s{57+2*ti}")
    for ti in range(4):
        a(f"v_writelane_b32 v110, s{56+2*ti}, {ti}")
    a("s_lshl_b32 s70, s16, 4")
    a("s_add_u32 s70, s70, s72")
    a("s_lshl_b32 s70, s70, 8")
    a("s_lshl_b32 s73, s71, 2")
    a("s_add_u32 s70, s70, s73")
    a(f"s_add_u32 s70, s70, {NRM}")
    a("v_and_b32 v4, 1, v1")
    a("v_lshlrev_b32 v4, 8, v4")
    a("v_lshrrev_b32 v6, 1, v1")
    a("v_lshl_add_u32 v4, v6, 2, v4")
    a(f"v_mov_b32 v5, {OOB}")
    a("v_cmp_gt_u32 vcc, 4, v1")
    a("s_nop 1")
    a("v_cndmask_b32 v4, v5, v4, vcc")
    a("buffer_store_dword v110, v4, s[28:31], s70 offen")
    a("s_branch k1_fin")
    a.label("k1_vb")
    st.n = n_save
    mainloop("XW")
    a("s_cmp_eq_u32 s16, 3")
    a("s_cbranch_scc1 k1_b1")
    a("v_mov_b32 v5, 0x3f803f80")
    a("v_cmp_eq_u32 vcc, 28, v2")
    a("v_mov_b32 v6, 0")
    a("v_cmp_lt_u32 s[44:45], 27, v2")
    a("s_lshl_b32 s70, s72, 6")
    a("v_cndmask_b32 v6, v6, v5, vcc")
    a("s_add_u32 s70, s70, s71")
    a("s_lshl_b32 s70, s70, 11")
    a(f"s_add_u32 s70, s70, {VF}")
    a("v_lshlrev_b32 v4, 4, v1")
    a("s_nop 3")
    for tbi in range(2):
        for g in range(2):
            ti = 2*tbi + g
            d = ACC + 16*ti
            for q in range(8):
                a(f"v_cvt_pk_bf16_f32 v{P+8*ti+q}, v{d+2*q}, v{d+2*q+1}")
            for q in range(8):
                a(f"v_cndmask_b32 v{P+8*ti+q}, v{P+8*ti+q}, v6, s[44:45]")
            off = g*131072 + tbi*2048
            a(f"s_add_u32 s73, s70, {off}")
            a(f"buffer_store_dwordx4 {vr(P+8*ti,4)}, v4, s[28:31], s73 offen")
            a(f"buffer_store_dwordx4 {vr(P+8*ti+4,4)}, v4, s[28:31], s73 offen offset:1024")
    a("s_branch k1_fin")
    a.label("k1_b1")
    a("v_lshlrev_b32 v4, 12, v2")
    a("v_lshl_add_u32 v4, v3, 4, v4")
    a(f"v_mov_b32 v5, {OOB}")
    a("v_cmp_gt_u32 vcc, 28, v2")
    a("s_mul_i32 s70, s72, 28*4096")
    a("s_lshl_b32 s73, s71, 6")
    a("v_cndmask_b32 v4, v5, v4, vcc")
    a("s_add_u32 s70, s70, s73")
    a(f"s_add_u32 s70, s70, {ZF}")
    a("s_nop 3")
    for tbi in range(2):
        for g in range(2):
            ti = 2*tbi + g
            d = ACC + 16*ti
            for q in range(8):
                a(f"v_cvt_pk_bf16_f32 v{P+8*ti+q}, v{d+2*q}, v{d+2*q+1}")
            off = g*28*4096 + tbi*64
            a(f"s_add_u32 s73, s70, {off}")
            a(f"buffer_store_dwordx4 {vr(P+8*ti,4)}, v4, s[28:31], s73 offen")
            a(f"buffer_store_dwordx4 {vr(P+8*ti+4,4)}, v4, s[28:31], s73 offen offset:32")
    a.label("k1_fin")
    st.finish()
    a.label("k1_end")
    a("s_endpgm")

def desc(name, vgpr, sgpr=102):
    return f""".section .rodata,"a"
.p2align 6
.amdhsa_kernel {name}
  .amdhsa_next_free_vgpr {vgpr}
  .amdhsa_next_free_sgpr {sgpr}
  .amdhsa_accum_offset {(vgpr+3)//4*4}
  .amdhsa_group_segment_fixed_size 0
  .amdhsa_kernarg_size 72
  .amdhsa_user_sgpr_count 2
  .amdhsa_user_sgpr_kernarg_segment_ptr 1
  .amdhsa_system_sgpr_workgroup_id_x 1
  .amdhsa_float_denorm_mode_32 3
.end_amdhsa_kernel
"""
```

```python
from asmlib import *
from common import *
import stamps
from k1 import srd

B2BASE = 65536
TB2_F32 = 0; TB2_F64 = 6144; TB2_TW1 = 30720; TB2_TW2 = 47104; TB2_SIZE = 63488
LDS_W = B2BASE + TB2_SIZE
LDS_MX = LDS_W + 8192
K2_LDS = LDS_MX + 4096
NBM = 18
BMAX = 48.0
WITH_B2 = True
FLIP = 5
B2PRIO = 0
W3PRIO = 1
KVPF = False

QT = [8, 16, 24, 32]; KB_ = [40, 48]; VB_ = [56, 64]; SB = [72, 88]; PB = [104, 112]; OT = [120, 136, 152, 168]; TMP = 184
Q0, Q1 = QT[0], QT[1]; S0, S1 = SB; P0, P1 = PB; O0, O1 = OT[0], OT[1]

def mf(d, a_, b_, c):
    return f"v_mfma_f32_32x32x16_bf16 {d}, {a_}, {b_}, {c}"

def expcvt(a, S, P, grp):
    r = S + 4*grp
    for k in range(4):
        a(f"v_exp_f32 v{r+k}, v{r+k}")
    a(f"v_cvt_pk_bf16_f32 v{P+2*grp}, v{r}, v{r+1}")
    a(f"v_cvt_pk_bf16_f32 v{P+2*grp+1}, v{r+2}, v{r+3}")

def block(a, par, nt):
    Kc, Kn = KB_[par], KB_[1-par]
    Vc, Vp = VB_[par], VB_[1-par]
    for t in range(nt):
        Sc, Sn = SB[t % 2], SB[(t+1) % 2]
        Pc, Pp = PB[t % 2], PB[(t+1) % 2]
        last = (t == nt-1)
        Ks, Qn = (Kn, QT[0]) if last else (Kc, QT[t+1])
        Vs, Op = (Vp, OT[nt-1]) if t == 0 else (Vc, OT[t-1])
        sn = vr(Sn, 16); op = vr(Op, 16)
        if last:
            a("s_waitcnt vmcnt(%d)" % (6 if nt == 2 else 4))
        a(mf(sn, vr(Ks, 4), vr(Qn, 4), "0"))
        expcvt(a, Sc, Pc, 0)
        a(mf(sn, vr(Ks+4, 4), vr(Qn+4, 4), sn))
        expcvt(a, Sc, Pc, 1)
        if t == nt-2:
            a(f"buffer_load_dwordx4 {vr(Kc,4)}, v2, s[4:7], s18 offen")
            a(f"buffer_load_dwordx4 {vr(Kc+4,4)}, v2, s[4:7], s18 offen offset:1024")
        if t == 1:
            a("s_waitcnt vmcnt(4)")
        a(mf(op, vr(Vs, 4), vr(Pp, 4), op))
        expcvt(a, Sc, Pc, 2)
        a(mf(op, vr(Vs+4, 4), vr(Pp+4, 4), op))
        if t == 0:
            a(f"buffer_load_dwordx4 {vr(Vp,4)}, v2, s[4:7], s19 offen")
            a(f"buffer_load_dwordx4 {vr(Vp+4,4)}, v2, s[4:7], s19 offen offset:1024")
        if last:
            a("s_add_u32 s18, s18, 2048")
            a("s_add_u32 s19, s19, 2048")
            a("s_sub_u32 s17, s17, 1")
        expcvt(a, Sc, Pc, 3)

def cmulw_stage(a, Cre, Cim, Dre, Dim, vbase, off0, T):
    for q in range(4):
        a(f"ds_read_b128 {vr(T+4*q,4)}, v{vbase} offset:{off0+q*1024}")
    U = T + 16
    t = T + 32
    for q in range(4):
        a(f"s_waitcnt lgkmcnt({3-q})")
        for b in range(4):
            a(f"v_lshlrev_b32 v{U+b}, 16, v{T+4*q+b}")
            a(f"v_and_b32 v{U+4+b}, 0xffff0000, v{T+4*q+b}")
        for h in range(2):
            re = vr(Cre+4*q+2*h, 2)
            c = vr(U+2*h, 2); s = vr(U+4+2*h, 2)
            t1 = vr(t+4*h, 2); t2 = vr(t+4*h+2, 2)
            a(f"v_pk_mul_f32 {t1}, {re}, {c}")
            a(f"v_pk_mul_f32 {t2}, {re}, {s}")
        for h in range(2):
            im = vr(Cim+4*q+2*h, 2)
            c = vr(U+2*h, 2); s = vr(U+4+2*h, 2)
            t1 = vr(t+4*h, 2); t2 = vr(t+4*h+2, 2)
            a(f"v_pk_fma_f32 {t1}, {im}, {s}, {t1} neg_lo:[1,0,0] neg_hi:[1,0,0]")
            a(f"v_pk_fma_f32 {t2}, {im}, {c}, {t2}")
        for h in range(2):
            a(f"v_cvt_pk_bf16_f32 v{Dre+2*q+h}, v{t+4*h}, v{t+4*h+1}")
            a(f"v_cvt_pk_bf16_f32 v{Dim+2*q+h}, v{t+4*h+2}, v{t+4*h+3}")

def cmul_stage(a, Cre, Cim, Dre, Dim, vbase, off0, T, lgkm_pre=0):
    for q in range(4):
        a(f"ds_read_b128 {vr(T+8*q,4)}, v{vbase} offset:{off0+(2*q)*1024}")
        a(f"ds_read_b128 {vr(T+8*q+4,4)}, v{vbase} offset:{off0+(2*q+1)*1024}")
    t = T + 32
    for q in range(4):
        a(f"s_waitcnt lgkmcnt({2*(3-q)})")
        for h in range(2):
            re = vr(Cre+4*q+2*h, 2); im = vr(Cim+4*q+2*h, 2)
            c = vr(T+8*q+2*h, 2); s = vr(T+8*q+4+2*h, 2)
            t1 = vr(t+4*h, 2); t2 = vr(t+4*h+2, 2)
            a(f"v_pk_mul_f32 {t1}, {re}, {c}")
            a(f"v_pk_mul_f32 {t2}, {re}, {s}")
        for h in range(2):
            re = vr(Cre+4*q+2*h, 2); im = vr(Cim+4*q+2*h, 2)
            c = vr(T+8*q+2*h, 2); s = vr(T+8*q+4+2*h, 2)
            t1 = vr(t+4*h, 2); t2 = vr(t+4*h+2, 2)
            a(f"v_pk_fma_f32 {t1}, {im}, {s}, {t1} neg_lo:[1,0,0] neg_hi:[1,0,0]")
            a(f"v_pk_fma_f32 {t2}, {im}, {c}, {t2}")
        for h in range(2):
            a(f"v_cvt_pk_bf16_f32 v{Dre+2*q+h}, v{t+4*h}, v{t+4*h+1}")
            a(f"v_cvt_pk_bf16_f32 v{Dim+2*q+h}, v{t+4*h+2}, v{t+4*h+3}")

def gen_b2(a, st):
    ZR = 8; ZI = 24
    CRE = [64, 80]; CIM = [96, 112]
    DRE = 128; DIM = 144
    CF = 160
    T = 208
    VB0 = 4; VB1 = 5; VZ = 6; VZI = 7
    NOP = "s_nop 7\ns_nop 3"
    a.c("---- B2: FFT - filter - IFFT of column s2 ----")
    a(f"s_setprio {B2PRIO}")
    a("s_lshl_b32 s20, s2, 1")
    a("s_cmp_eq_u32 s2, 224")
    a("s_cselect_b32 s20, 1, s20")
    a("s_lshl_b32 s21, s2, 1")
    a("s_add_u32 s21, s21, 1")
    a("s_lshl_b32 s20, s20, 12")
    a("s_lshl_b32 s21, s21, 12")
    a("s_cmp_eq_u32 s2, 224")
    a("s_cselect_b32 s21, 0x40000000, s21")
    a("s_cmp_eq_u32 s2, 0")
    a("s_cselect_b32 s21, 0x40000000, s21")
    a("v_and_b32 v3, 31, v1")
    a(f"v_lshrrev_b32 v{VZ}, 5, v1")
    a(f"v_lshlrev_b32 v{VZ}, 4, v{VZ}")
    a(f"v_lshl_add_u32 v{VZ}, v3, 6, v{VZ}")
    a(f"s_add_u32 s22, s20, {ZF}")
    a(f"s_add_u32 s23, s21, {ZF}")
    for mt in range(2):
        for ks in range(2):
            a(f"buffer_load_dwordx4 {vr(ZR+4*(2*mt+ks),4)}, v{VZ}, s[4:7], s22 offen offset:{mt*2048+ks*32}")
    for mt in range(2):
        for ks in range(2):
            a(f"buffer_load_dwordx4 {vr(ZI+4*(2*mt+ks),4)}, v{VZ}, s[4:7], s23 offen offset:{mt*2048+ks*32}")
    def dma(srd_, goff_sreg_init, ldsoff, n):
        a(f"s_mov_b32 s24, {goff_sreg_init}")
        a(f"s_mov_b32 m0, {ldsoff}")
        for k in range(n):
            if k and k % 4 == 0:
                a("s_add_u32 s24, s24, 4096")
                a("s_add_u32 m0, m0, 4096")
            if k % 4 == 0:
                a("s_nop 0")
            a(f"buffer_load_dwordx4 v2, {srd_}, s24 offen offset:{(k%4)*1024} lds")
    dma("s[8:11]", TB2_F32, B2BASE + TB2_F32, 6)
    dma("s[8:11]", TB2_TW1, B2BASE + TB2_TW1, 16)
    dma("s[8:11]", TB2_F64, B2BASE + TB2_F64, 24)
    a(f"v_add_u32 v{VB0}, {B2BASE}, v2")
    a(f"v_add_u32 v{VB1}, {LDS_W}, v2")
    a("s_waitcnt vmcnt(40)")
    st.stamp()
    a("s_lshl_b32 s25, s2, 13")
    a(f"s_add_u32 s25, s25, {WT}")
    dma("s[4:7]", "s25", LDS_W, 8)
    for f in range(6):
        a(f"ds_read_b128 {vr(CF+4*f,4)}, v{VB0} offset:{TB2_F32+f*1024}")
    a("s_waitcnt lgkmcnt(0)")
    Fr = [vr(CF, 4), vr(CF+4, 4)]; Fi = [vr(CF+8, 4), vr(CF+12, 4)]; nFi = [vr(CF+16, 4), vr(CF+20, 4)]
    for mt in range(2):
        cre = vr(CRE[mt], 16); cim = vr(CIM[mt], 16)
        zr = [vr(ZR+4*(2*mt+ks), 4) for ks in range(2)]; zi = [vr(ZI+4*(2*mt+ks), 4) for ks in range(2)]
        a(mf(cre, zr[0], Fr[0], "0")); a(mf(cim, zr[0], Fi[0], "0"))
        a(mf(cre, zr[1], Fr[1], cre)); a(mf(cim, zr[1], Fi[1], cim))
        a(mf(cre, zi[0], nFi[0], cre)); a(mf(cim, zi[0], Fr[0], cim))
        a(mf(cre, zi[1], nFi[1], cre)); a(mf(cim, zi[1], Fr[1], cim))
    a("s_waitcnt vmcnt(32)")
    st.stamp()
    a(NOP)
    for mt in range(2):
        cmul_stage(a, CRE[mt], CIM[mt], DRE+8*mt, DIM+8*mt, VB0, TB2_TW1 + mt*8192, T)
    dma("s[8:11]", TB2_TW2, B2BASE + TB2_TW2, 16)
    a("s_waitcnt vmcnt(24)")
    st.stamp()
    def big_step(data_is_A, conj):
        seq = [(lt, kap) for lt in range(2) for kap in range(4)]
        def rd(idx):
            lt, kap = seq[idx]
            buf = CF + 12*(idx % 4)
            for v in range(3):
                a(f"ds_read_b128 {vr(buf+4*v,4)}, v{VB0} offset:{TB2_F64+((lt*4+kap)*3+v)*1024}")
        rd(0); rd(1); rd(2)
        for idx, (lt, kap) in enumerate(seq):
            rem = min(len(seq)-1-idx, 2)
            a(f"s_waitcnt lgkmcnt({3*rem})")
            buf = CF + 12*(idx % 4)
            fr, fi, nfi = vr(buf, 4), vr(buf+4, 4), vr(buf+8, 4)
            dre = vr(DRE+4*kap, 4); dim = vr(DIM+4*kap, 4)
            cre = vr(CRE[lt], 16); cim = vr(CIM[lt], 16)
            c0 = "0" if kap == 0 else None
            x1, x2 = (fi, nfi) if conj else (nfi, fi)
            def m(d, k, x, c):
                return mf(d, x, k, c) if data_is_A else mf(d, k, x, c)
            a(m(cre, fr, dre, c0 or cre))
            a(m(cim, x2, dre, c0 or cim))
            a(m(cre, x1, dim, cre))
            a(m(cim, fr, dim, cim))
            if idx + 3 < len(seq):
                rd(idx + 3)
    big_step(False, False)
    a("s_waitcnt vmcnt(16)")
    st.stamp()
    a(NOP)
    for mt in range(2):
        cmulw_stage(a, CRE[mt], CIM[mt], DRE+8*mt, DIM+8*mt, VB1, mt*4096, T)
    a("s_nop 1")
    st.stamp()
    big_step(True, True)
    a("s_waitcnt vmcnt(0)")
    for f in range(6):
        a(f"ds_read_b128 {vr(CF+4*f,4)}, v{VB0} offset:{TB2_F32+f*1024}")
    a(NOP)
    for nt in range(2):
        cmul_stage(a, CRE[nt], CIM[nt], DRE+8*nt, DIM+8*nt, VB0, TB2_TW2 + nt*8192, T)
    a("s_nop 1")
    st.stamp()
    for nt in range(2):
        cre = vr(CRE[nt], 16); cim = vr(CIM[nt], 16)
        dr = [vr(DRE+8*nt+4*ks, 4) for ks in range(2)]; di = [vr(DIM+8*nt+4*ks, 4) for ks in range(2)]
        a(mf(cre, dr[0], Fr[0], "0")); a(mf(cim, dr[0], nFi[0], "0"))
        a(mf(cre, dr[1], Fr[1], cre)); a(mf(cim, dr[1], nFi[1], cim))
        a(mf(cre, di[0], Fi[0], cre)); a(mf(cim, di[0], Fr[0], cim))
        a(mf(cre, di[1], Fi[1], cre)); a(mf(cim, di[1], Fr[1], cim))
    a("v_and_b32 v3, 31, v1")
    a(f"v_lshrrev_b32 v{VZ}, 5, v1")
    a(f"v_lshlrev_b32 v{VZ}, 4, v{VZ}")
    a(f"v_lshl_add_u32 v{VZ}, v3, 7, v{VZ}")
    a(f"s_add_u32 s22, s20, {ZT}")
    a(f"s_add_u32 s23, s21, {ZT}")
    a(NOP)
    for part, (C, so) in enumerate(((CRE, "s22"), (CIM, "s23"))):
        for nt in range(2):
            Pk = DRE + 16*part + 8*nt
            for q in range(8):
                a(f"v_cvt_pk_bf16_f32 v{Pk+q}, v{C[nt]+2*q}, v{C[nt]+2*q+1}")
            a("s_nop 1")
            for m in range(2):
                a(f"v_permlane32_swap_b32 v{Pk+4*m}, v{Pk+4*m+2}")
                a(f"v_permlane32_swap_b32 v{Pk+4*m+1}, v{Pk+4*m+3}")
            for m in range(2):
                a(f"buffer_store_dwordx4 {vr(Pk+4*m,4)}, v{VZ}, s[4:7], {so} offen offset:{nt*64+m*32}")


def attn_loop(a, nt, tag):
    a(mf(vr(S0, 16), vr(KB_[0], 4), vr(Q0, 4), "0"))
    a(mf(vr(S0, 16), vr(KB_[0]+4, 4), vr(Q0+4, 4), vr(S0, 16)))
    a("s_nop 7")
    a("s_nop 2")
    a.label(f"k2_loop{tag}")
    l0 = len(a.L)
    block(a, 0, nt)
    a("s_cmp_eq_u32 s17, 0")
    a(f"s_cbranch_scc1 k2_exit0{tag}")
    block(a, 1, nt)
    a("s_cmp_gt_u32 s17, s43")
    a(f"s_cbranch_scc1 k2_loop{tag}")
    a("s_setprio 0")
    a("s_cmp_lg_u32 s17, 0")
    a(f"s_cbranch_scc1 k2_loop{tag}")
    a.loops = getattr(a, "loops", []) + [a.L[l0:]]
    ol = vr(OT[nt-1], 16); pl = PB[(nt-1) % 2]
    a(mf(ol, vr(VB_[1], 4), vr(pl, 4), ol))
    a(mf(ol, vr(VB_[1]+4, 4), vr(pl+4, 4), ol))
    a(f"s_branch k2_fin{tag}")
    a.label(f"k2_exit0{tag}")
    a(mf(ol, vr(VB_[0], 4), vr(pl, 4), ol))
    a(mf(ol, vr(VB_[0]+4, 4), vr(pl+4, 4), ol))
    a.label(f"k2_fin{tag}")
    a("s_nop 7")
    a("s_nop 3")

def bound_check(a, nyounger):
    N0, N1 = TMP+2, TMP+3
    a(f"s_waitcnt vmcnt({nyounger})")
    for sh in (1, 2, 4, 8):
        a(f"v_max_u32_dpp v{N0}, v{N0}, v{N0} row_shr:{sh} row_mask:0xf bank_mask:0xf")
        a(f"v_max_u32_dpp v{N1}, v{N1}, v{N1} row_shr:{sh} row_mask:0xf bank_mask:0xf")
        a("s_nop 0")
    a(f"v_max_u32_dpp v{N0}, v{N0}, v{N0} row_bcast:15 row_mask:0xa bank_mask:0xf")
    a(f"v_readlane_b32 s38, v{N1}, 15")
    a("s_nop 0")
    a(f"v_max_u32_dpp v{N0}, v{N0}, v{N0} row_bcast:31 row_mask:0xc bank_mask:0xf")
    a(f"v_mov_b32 v{N1}, {f2u(0.25):#x}")
    a(f"v_readlane_b32 s37, v{N0}, 63")
    a(f"v_mov_b32 v{N0+2}, {f2u(1.02):#x}")
    a("s_nop 0")
    a(f"v_mov_b32 v{N0}, s37")
    a(f"v_mul_f32 v{N0}, s38, v{N0}")
    a(f"v_sqrt_f32 v{N0}, v{N0}")
    a("s_nop 0")
    a(f"v_fma_f32 v{N0}, v{N0}, v{N0+2}, v{N1}")
    a("s_nop 0")
    a(f"v_readfirstlane_b32 s37, v{N0}")
    a("s_nop 1")
    a(f"s_cmp_gt_u32 s37, {f2u(BMAX):#x}")
    a("s_cbranch_scc1 k2_slow")

def gen_k2(a):
    a.label("k2_kernel")
    a("s_cmp_ge_u32 s2, 256")
    a("s_cbranch_scc1 k2_end")
    st = stamps.St(a, 1, "s26", "s62", "s63")
    st.start()
    a("s_setprio 3")
    a("s_load_dwordx2 s[12:13], s[0:1], 64")
    if stamps.ENABLED: a("s_load_dwordx2 s[62:63], s[0:1], 64")
    a("s_getpc_b64 s[14:15]")
    a("s_add_u32 s14, s14, TB2@rel32@lo+4")
    a("s_addc_u32 s15, s15, TB2@rel32@hi+12")
    a("v_lshrrev_b32 v3, 6, v0")
    a("v_and_b32 v1, 63, v0")
    a("v_readfirstlane_b32 s26, v3")
    a("v_lshlrev_b32 v2, 4, v1")
    srd(a, 8, "s14", "s15", TB2_SIZE)
    a("s_and_b32 s27, s2, 7")
    a("s_lshr_b32 s28, s2, 3")
    a("s_lshl_b32 s46, s27, 1")
    a("s_and_b32 s29, s28, 1")
    a("s_or_b32 s46, s46, s29")
    a("s_lshr_b32 s47, s28, 1")
    a("s_and_b32 s48, s26, 3")
    a("s_lshr_b32 s49, s26, 2")
    a("s_lshl_b32 s30, s46, 8")
    a(f"s_add_u32 s31, s30, {NRM+4096}")
    a("s_lshl_b32 s29, s47, 4")
    a("s_add_u32 s30, s30, s29")
    a(f"s_add_u32 s30, s30, {NRM}")
    a(f"v_lshlrev_b32 v{TMP}, 2, v1")
    a(f"v_and_b32 v{TMP+1}, 3, v1")
    a(f"v_lshlrev_b32 v{TMP+1}, 2, v{TMP+1}")
    a("s_lshl_b32 s32, s46, 6")
    a("s_lshl_b32 s35, s47, 2")
    a("s_lshl_b32 s34, s49, 1")
    a("s_add_u32 s33, s35, s34")
    a("s_add_u32 s34, s32, s33")
    a("s_lshl_b32 s34, s34, 11")
    a(f"s_mul_i32 s36, s48, {NBM}")
    a("s_cmp_eq_u32 s26, 3")
    a(f"s_mov_b32 s17, {NBM}")
    a(f"s_cselect_b32 s17, {64-3*NBM}, s17")
    a("s_add_u32 s36, s36, s32")
    a("s_lshl_b32 s36, s36, 11")
    a(f"s_add_u32 s18, s36, {KF}")
    a(f"s_add_u32 s19, s36, {VF}")
    a("s_waitcnt lgkmcnt(0)")
    srd(a, 4, "s12", "s13", WS_USED)
    st.stamp()
    n_common = st.n
    if KVPF:
        a("s_lshl_b32 s36, s46, 17")
        a("s_lshl_b32 s37, s47, 13")
        a("s_add_u32 s36, s36, s37")
        a("s_lshl_b32 s37, s26, 10")
        a("s_add_u32 s36, s36, s37")
        a(f"s_add_u32 s37, s36, {KF}")
        a(f"s_add_u32 s36, s36, {VF}")
        a("s_mov_b32 s50, s37")
        a("s_mov_b32 s51, s36")
    def kvpf():
        if KVPF:
            a(f"buffer_load_dwordx4 v[248:251], v2, s[4:7], s50 offen")
            a(f"buffer_load_dwordx4 v[252:255], v2, s[4:7], s51 offen")
    a("s_cmp_eq_u32 s26, 7")
    a("s_cbranch_scc1 k2_w7")
    a("s_cmp_eq_u32 s26, 3")
    a("s_cbranch_scc1 k2_w3")
    a(f"buffer_load_dword v{TMP+2}, v{TMP}, s[4:7], s31 offen")
    a(f"buffer_load_dword v{TMP+3}, v{TMP+1}, s[4:7], s30 offen")
    for t in range(2):
        for m in range(2):
            a(f"buffer_load_dwordx4 {vr(QT[t]+4*m,4)}, v2, s[4:7], s34 offen offset:{t*2048+m*1024}")
    a(f"buffer_load_dwordx4 {vr(KB_[0],4)}, v2, s[4:7], s18 offen")
    a(f"buffer_load_dwordx4 {vr(KB_[0]+4,4)}, v2, s[4:7], s18 offen offset:1024")
    a(f"buffer_load_dwordx4 {vr(KB_[1],4)}, v2, s[4:7], s18 offen offset:2048")
    a(f"buffer_load_dwordx4 {vr(KB_[1]+4,4)}, v2, s[4:7], s18 offen offset:3072")
    a(f"buffer_load_dwordx4 {vr(VB_[0],4)}, v2, s[4:7], s19 offen")
    a(f"buffer_load_dwordx4 {vr(VB_[0]+4,4)}, v2, s[4:7], s19 offen offset:1024")
    kvpf()
    for r in range(32):
        a(f"v_mov_b32 v{O0+r}, 0")
    for r in range(8):
        a(f"v_mov_b32 v{P1+r}, 0")
        a(f"v_mov_b32 v{VB_[1]+r}, 0")
    npf = 2 if KVPF else 0
    bound_check(a, 10 + npf)
    st.stamp()
    a("s_lshr_b32 s37, s37, 16")
    a("s_add_u32 s37, s37, 1")
    a("s_or_b32 s37, s37, 0x8000")
    a(f"s_waitcnt vmcnt({6+npf})")
    a("s_mov_b32 exec_lo, 0")
    a(f"v_mov_b32 v{QT[0]+6}, s37")
    a(f"v_mov_b32 v{QT[1]+6}, s37")
    a("s_mov_b32 exec_lo, -1")
    a("s_add_u32 s18, s18, 4096")
    a("s_add_u32 s19, s19, 2048")
    a("s_cmp_lt_u32 s26, 4")
    a(f"s_cselect_b32 s43, {FLIP}, 0")
    a("s_cbranch_scc1 k2_old")
    a("s_setprio 1")
    a("s_branch k2_go")
    a.label("k2_old")
    a("s_setprio 2")
    a.label("k2_go")
    a(f"s_waitcnt vmcnt({4+npf})")
    st.stamp()
    attn_loop(a, 2, "a")
    a.label("k2_red")
    st.stamp()
    a("s_lshl_b32 s37, s26, 13")
    a(f"v_add_u32 v{TMP}, s37, v2")
    for t in range(2):
        for q in range(4):
            a(f"ds_write_b128 v{TMP}, {vr(OT[t]+4*q,4)} offset:{(t*4+q)*1024}")
    a.label("k2_red2")
    a("s_lshr_b32 s38, s48, 1")
    a("s_and_b32 s39, s48, 1")
    a("s_lshl_b32 s40, s49, 15")
    a("s_lshl_b32 s41, s38, 12")
    a("s_add_u32 s40, s40, s41")
    a("s_lshl_b32 s41, s39, 11")
    a("s_add_u32 s41, s41, s40")
    a(f"v_add_u32 v{TMP+1}, s41, v2")
    a(f"v_and_b32 v{TMP+2}, 31, v1")
    a(f"v_lshlrev_b32 v{TMP+2}, 4, v{TMP+2}")
    a("s_add_u32 s40, s40, 3*1024+512")
    a(f"v_add_u32 v{TMP+2}, s40, v{TMP+2}")
    a("s_add_u32 s42, s33, s38")
    a("s_lshl_b32 s42, s42, 4")
    a("s_add_u32 s42, s42, s46")
    a("s_lshl_b32 s42, s42, 1")
    a("s_add_u32 s42, s42, s39")
    a("s_lshl_b32 s42, s42, 10")
    a(f"s_add_u32 s42, s42, {OF}")
    a("s_waitcnt lgkmcnt(0)")
    a("s_barrier")
    nb = st.n
    st.n = 9
    st.stamp()
    R = 72; L = TMP+4
    for k in range(4):
        a(f"ds_read_b32 v{L+k}, v{TMP+2} offset:{k*8192}")
    for k in range(4):
        a(f"ds_read_b128 {vr(R+8*k,4)}, v{TMP+1} offset:{k*8192}")
        a(f"ds_read_b128 {vr(R+8*k+4,4)}, v{TMP+1} offset:{k*8192+1024}")
    a("s_cmp_eq_u32 s39, 1")
    a("s_cselect_b32 s45, -1, 0")
    a("s_mov_b32 s44, 0")
    a("s_waitcnt lgkmcnt(8)")
    a(f"v_add_f32 v{L}, v{L}, v{L+1}")
    a(f"v_add_f32 v{L+2}, v{L+2}, v{L+3}")
    a(f"v_add_f32 v{L}, v{L}, v{L+2}")
    a(f"v_rcp_f32 v{L}, v{L}")
    a("s_waitcnt lgkmcnt(0)")
    for r in range(0, 8, 2):
        a(f"v_pk_add_f32 {vr(R+r,2)}, {vr(R+r,2)}, {vr(R+8+r,2)}")
        a(f"v_pk_add_f32 {vr(R+16+r,2)}, {vr(R+16+r,2)}, {vr(R+24+r,2)}")
    for r in range(0, 8, 2):
        a(f"v_pk_add_f32 {vr(R+r,2)}, {vr(R+r,2)}, {vr(R+16+r,2)}")
    for r in range(0, 8, 2):
        a(f"v_pk_mul_f32 {vr(R+r,2)}, {vr(R+r,2)}, {vr(L,2)} op_sel_hi:[1,0]")
    for q in range(4):
        a(f"v_cvt_pk_bf16_f32 v{104+q}, v{R+2*q}, v{R+2*q+1}")
    a("v_cndmask_b32 v106, v106, 0, s[44:45]")
    a("v_cndmask_b32 v107, v107, 0, s[44:45]")
    a("buffer_store_dwordx4 v[104:107], v2, s[4:7], s42 offen")
    st.finish()
    a.label("k2_end")
    a("s_endpgm")
    a.label("k2_w3")
    st.n = n_common
    a(f"buffer_load_dword v{TMP+2}, v{TMP}, s[4:7], s31 offen")
    a(f"buffer_load_dword v{TMP+3}, v{TMP+1}, s[4:7], s30 offen")
    a("s_add_u32 s35, s34, 4096")
    for t in range(4):
        for m in range(2):
            so = "s34" if t < 2 else "s35"
            a(f"buffer_load_dwordx4 {vr(QT[t]+4*m,4)}, v2, s[4:7], {so} offen offset:{(t%2)*2048+m*1024}")
    a(f"buffer_load_dwordx4 {vr(KB_[0],4)}, v2, s[4:7], s18 offen")
    a(f"buffer_load_dwordx4 {vr(KB_[0]+4,4)}, v2, s[4:7], s18 offen offset:1024")
    a(f"buffer_load_dwordx4 {vr(VB_[0],4)}, v2, s[4:7], s19 offen")
    a(f"buffer_load_dwordx4 {vr(VB_[0]+4,4)}, v2, s[4:7], s19 offen offset:1024")
    a(f"buffer_load_dwordx4 {vr(KB_[1],4)}, v2, s[4:7], s18 offen offset:2048")
    a(f"buffer_load_dwordx4 {vr(KB_[1]+4,4)}, v2, s[4:7], s18 offen offset:3072")
    kvpf()
    for r in range(64):
        a(f"v_mov_b32 v{OT[0]+r}, 0")
    for r in range(8):
        a(f"v_mov_b32 v{PB[1]+r}, 0")
        a(f"v_mov_b32 v{VB_[1]+r}, 0")
    bound_check(a, 14 + npf)
    st.stamp()
    a("s_lshr_b32 s37, s37, 16")
    a("s_add_u32 s37, s37, 1")
    a("s_or_b32 s37, s37, 0x8000")
    a(f"s_waitcnt vmcnt({6+npf})")
    a("s_mov_b32 exec_lo, 0")
    for t in range(4):
        a(f"v_mov_b32 v{QT[t]+6}, s37")
    a("s_mov_b32 exec_lo, -1")
    a("s_add_u32 s18, s18, 4096")
    a("s_add_u32 s19, s19, 2048")
    a("s_mov_b32 s43, 0")
    a(f"s_setprio {W3PRIO}")
    a(f"s_waitcnt vmcnt({4+npf})")
    st.stamp()
    attn_loop(a, 4, "b")
    st.stamp()
    a(f"v_add_u32 v{TMP}, {3*8192}, v2")
    for t in range(4):
        for q in range(4):
            a(f"ds_write_b128 v{TMP}, {vr(OT[t]+4*q,4)} offset:{(t//2)*32768 + ((t%2)*4+q)*1024}")
    a("s_branch k2_red2")
    a.label("k2_w7")
    st.n = n_common
    kvpf()
    if WITH_B2:
        a("s_cmp_ge_u32 s2, 225")
        a("s_cbranch_scc1 k2_w7b")
        gen_b2(a, st)
    a.label("k2_w7b")
    a(f"v_lshlrev_b32 v{TMP}, 2, v1")
    a(f"v_and_b32 v{TMP+1}, 3, v1")
    a(f"v_lshlrev_b32 v{TMP+1}, 2, v{TMP+1}")
    a(f"buffer_load_dword v{TMP+2}, v{TMP}, s[4:7], s31 offen")
    a(f"buffer_load_dword v{TMP+3}, v{TMP+1}, s[4:7], s30 offen")
    bound_check(a, 0)
    a("s_branch k2_red2")
    a.label("k2_slow")
    a("s_setprio 0")
    a("s_waitcnt vmcnt(0)")
    for t in range(2):
        for m in range(2):
            a(f"buffer_load_dwordx4 {vr(QT[t]+4*m,4)}, v2, s[4:7], s34 offen offset:{t*2048+m*1024}")
    a("s_lshl_b32 s36, s48, 4")
    a("s_add_u32 s36, s36, s32")
    a("s_lshl_b32 s36, s36, 11")
    a(f"s_add_u32 s18, s36, {KF}")
    a(f"s_add_u32 s19, s36, {VF}")
    a("s_mov_b32 s17, 16")
    for r in range(32):
        a(f"v_mov_b32 v{O0+r}, 0")
    M0_, M1_ = TMP+8, TMP+9
    X, Y = TMP+10, TMP+11
    a(f"v_mov_b32 v{M0_}, 0xff7fffff")
    a(f"v_mov_b32 v{M1_}, 0xff7fffff")
    a.label("k2_sloop")
    a(f"buffer_load_dwordx4 {vr(KB_[0],4)}, v2, s[4:7], s18 offen")
    a(f"buffer_load_dwordx4 {vr(KB_[0]+4,4)}, v2, s[4:7], s18 offen offset:1024")
    a(f"buffer_load_dwordx4 {vr(VB_[0],4)}, v2, s[4:7], s19 offen")
    a(f"buffer_load_dwordx4 {vr(VB_[0]+4,4)}, v2, s[4:7], s19 offen offset:1024")
    a("s_waitcnt vmcnt(0)")
    for t, (Q, S_, P_, O_, M_) in enumerate(((Q0, S0, P0, O0, M0_), (Q1, S1, P1, O1, M1_))):
        s = vr(S_, 16); o = vr(O_, 16)
        a(mf(s, vr(KB_[0], 4), vr(Q, 4), "0"))
        a(mf(s, vr(KB_[0]+4, 4), vr(Q+4, 4), s))
        a("s_nop 7\ns_nop 7")
        a(f"v_max3_f32 v{X}, v{S_}, v{S_+1}, v{S_+2}")
        for r in range(3, 15, 2):
            a(f"v_max3_f32 v{X}, v{X}, v{S_+r}, v{S_+r+1}")
        a(f"v_max_f32 v{X}, v{X}, v{S_+15}")
        a(f"v_mov_b32 v{Y}, v{X}")
        a("s_nop 1")
        a(f"v_permlane32_swap_b32 v{X}, v{Y}")
        a(f"v_max_f32 v{X}, v{X}, v{Y}")
        a(f"v_max_f32 v{X}, v{X}, v{M_}")
        a(f"v_sub_f32 v{Y}, v{M_}, v{X}")
        a(f"v_exp_f32 v{Y}, v{Y}")
        a(f"v_mov_b32 v{M_}, v{X}")
        for r in range(16):
            a(f"v_mul_f32 v{O_+r}, v{O_+r}, v{Y}")
        for r in range(16):
            a(f"v_sub_f32 v{S_+r}, v{S_+r}, v{X}")
        for g in range(4):
            expcvt(a, S_, P_, g)
        a("s_nop 1")
        a(mf(o, vr(VB_[0], 4), vr(P_, 4), o))
        a(mf(o, vr(VB_[0]+4, 4), vr(P_+4, 4), o))
    a("s_nop 7\ns_nop 7")
    a("s_add_u32 s18, s18, 2048")
    a("s_add_u32 s19, s19, 2048")
    a("s_sub_u32 s17, s17, 1")
    a("s_cmp_lg_u32 s17, 0")
    a("s_cbranch_scc1 k2_sloop")
    a("s_lshl_b32 s37, s26, 9")
    a(f"s_add_u32 s37, s37, {LDS_MX}")
    a(f"v_lshlrev_b32 v{X}, 2, v1")
    a(f"v_add_u32 v{Y}, s37, v{X}")
    a(f"ds_write_b32 v{Y}, v{M0_}")
    a(f"ds_write_b32 v{Y}, v{M1_} offset:256")
    a("s_lshl_b32 s37, s49, 11")
    a(f"s_add_u32 s37, s37, {LDS_MX}")
    a(f"v_add_u32 v{Y}, s37, v{X}")
    a("s_waitcnt lgkmcnt(0)")
    a("s_barrier")
    for t, (O_, M_) in enumerate(((O0, M0_), (O1, M1_))):
        for k in range(4):
            a(f"ds_read_b32 v{TMP+12+k}, v{Y} offset:{k*512+t*256}")
        a("s_waitcnt lgkmcnt(0)")
        a(f"v_max3_f32 v{TMP+12}, v{TMP+12}, v{TMP+13}, v{TMP+14}")
        a(f"v_max_f32 v{TMP+12}, v{TMP+12}, v{TMP+15}")
        a(f"v_sub_f32 v{TMP+12}, v{M_}, v{TMP+12}")
        a(f"v_exp_f32 v{TMP+12}, v{TMP+12}")
        a("s_nop 0")
        for r in range(16):
            a(f"v_mul_f32 v{O_+r}, v{O_+r}, v{TMP+12}")
    a("s_branch k2_red")
```

```python
import sys
from asmlib import *
from common import *
import k1, k2, k3, tables
def stamps_on():
    import stamps
    return stamps.ENABLED
NAME = "concat_heads__softmax_full_mha__spectral_gfnet__prompt"
def build(which=("k1","k2","k3"), order=None):
    hdr = open("cdna_kernels/%s.s.ref" % NAME).read().split("\n")
    head = [l for l in hdr[:12] if l.startswith(";") and "@launch" not in l and "Override" not in l and "grid=ceil" not in l]
    out = head[:]
    launches = []
    if "k1" in which: launches.append("; @launch kernel=k1_kernel grid=(256,1,1) block=(512,1,1) lds=%d" % k1.K1_LDS)
    if "k2" in which: launches.append("; @launch kernel=k2_kernel grid=(256,1,1) block=(512,1,1) lds=%d" % k2.K2_LDS)
    if "k3" in which: launches.append("; @launch kernel=k3_kernel grid=(256,1,1) block=(256,1,1) lds=%d" % k3.K3_LDS)
    if order:
        m = {"k1": launches[0], "k2": launches[1], "k3": launches[2]}
        launches = [m[x] for x in order]
    out += launches
    out.append('.amdgcn_target "amdgcn-amd-amdhsa--gfx950"')
    errs = []
    descs = []
    body = []
    for nm, fn, vg in (("k1", k1.gen_k1, 256 if stamps_on() else 240), ("k2", k2.gen_k2, 256), ("k3", k3.gen_k3, 256 if stamps_on() else 192)):
        if nm not in which: continue
        a = Asm()
        fn(a)
        errs += check(a.L, nm)
        for lp in getattr(a, "loops", []):
            errs += check(lp + lp, nm + "-loop")
        body.append(".text\n.globl %s_kernel\n.p2align 8\n.type %s_kernel,@function\n" % (nm, nm) + a.text())
        descs.append(k1.desc(nm + "_kernel", vg))
    txt = "\n".join(out) + "\n" + "\n".join(body) + "\n" + "\n".join(descs) + tables.gen_tables() + tables.gen_tb2()
    return txt, errs
if __name__ == "__main__":
    import stamps
    if len(sys.argv) > 2 and sys.argv[2] == "stamp": stamps.ENABLED = True
    order = None
    for x in sys.argv[3:]:
        if x.startswith("order="): order = x[6:].split(",")
        if x == "nopf": k1.PF = False
        if x.startswith("pre="): k1.PRE = int(x[4:])
        if x.startswith("flip="): k2.FLIP = int(x[5:])
        if x.startswith("nbm="): k2.NBM = int(x[4:])
        if x.startswith("b2p="): k2.B2PRIO = int(x[4:])
        if x.startswith("w3p="): k2.W3PRIO = int(x[4:])
        if x == "nokvpf": k2.KVPF = False
        if x == "nob2":
            k2.WITH_B2 = False
    txt, errs = build(order=order)
    for e in errs: print("HAZARD", e)
    open(sys.argv[1] if len(sys.argv) > 1 else "out.s", "w").write(txt)
    print("written", len(txt))
```

```python
from asmlib import *
from common import *
import stamps

def srd(a, s, lo, hi, size):
    a(f"s_mov_b32 s{s}, {lo}")
    a(f"s_and_b32 s{s+1}, {hi}, 0xffff")
    a(f"s_mov_b32 s{s+2}, {size}")
    a(f"s_mov_b32 s{s+3}, 0x20000")

K1_LDS = 163840
PRE = 2
PF = True
PF2 = False
LDNT = ' nt'
STNT = ''
OOB = "0x40000000"

def gen_k1(a):
    ACC = 128; XA = 16; WA = 32; P = 48
    XB = 64
    WB = 76
    WTR = 96
    VXE, VXO, VW = 4, 5, 6
    a.label("k1_kernel")
    a("s_cmp_ge_u32 s2, 256")
    a("s_cbranch_scc1 k1_end")
    st = stamps.St(a, 0, "s41", "s10", "s11")
    st.start()
    a("s_load_dwordx4 s[4:7], s[0:1], 0")
    a("s_load_dwordx2 s[8:9], s[0:1], 24")
    a("s_load_dwordx4 s[12:15], s[0:1], 32")
    a("s_load_dwordx2 s[10:11], s[0:1], 64")
    a("s_getpc_b64 s[42:43]")
    a("s_add_u32 s42, s42, TF@rel32@lo+4")
    a("s_addc_u32 s43, s43, TF@rel32@hi+12")
    a("s_and_b32 s40, s2, 7")
    a("s_lshr_b32 s41, s2, 3")
    a("s_lshr_b32 s16, s40, 1")
    a("s_and_b32 s17, s40, 1")
    a("s_lshl_b32 s17, s17, 3")
    a("s_and_b32 s44, s41, 7")
    a("s_or_b32 s17, s17, s44")
    a("s_lshr_b32 s18, s41, 3")
    a("v_lshrrev_b32 v7, 6, v0")
    a("v_and_b32 v1, 63, v0")
    a("v_readfirstlane_b32 s19, v7")
    a("v_and_b32 v2, 31, v1")
    a("v_lshrrev_b32 v3, 5, v1")
    a("s_nop 0")
    a("s_mov_b32 s41, s19")
    a("s_and_b32 s19, s19, 3")
    a("s_cmp_lt_u32 s41, 4")
    a("s_cbranch_scc1 k1_cons")
    a("s_cmp_eq_u32 s16, 3")
    a("s_mov_b32 s44, 896")
    a("s_cselect_b32 s44, 57344, s44")
    a("s_mov_b32 s47, 2688")
    a("s_cselect_b32 s47, 896, s47")
    a("s_mov_b32 s45, 8*896")
    a("s_cselect_b32 s45, 512*896, s45")
    a("s_lshl_b32 s48, s17, 7")
    a("s_lshl_b32 s49, s19, 5")
    a("s_add_u32 s48, s48, s49")
    a("s_lshl_b32 s49, s17, 2")
    a("s_add_u32 s49, s49, s19")
    a("s_cmp_eq_u32 s16, 3")
    a("s_cselect_b32 s48, s49, s48")
    a("s_mul_i32 s56, s48, 896")
    a("s_add_u32 s57, s56, s45")
    a("s_add_u32 s58, s57, s45")
    a("s_add_u32 s59, s58, s45")
    a("s_lshl_b32 s60, s19, 4")
    a("s_mul_i32 s60, s60, s47")
    a("s_lshl_b32 s46, s47, 2")
    a("s_add_u32 s61, s60, s46")
    a("s_add_u32 s62, s61, s46")
    a("s_add_u32 s63, s62, s46")
    a("s_lshl_b32 s46, s47, 6")
    a("s_lshl_b32 s55, s19, 12")
    a("v_lshrrev_b32 v7, 3, v1")
    a("v_and_b32 v8, 7, v1")
    a("v_lshrrev_b32 v9, 1, v7")
    a("v_xor_b32 v8, v8, v9")
    a("v_mul_lo_u32 v7, v7, s44")
    a(f"v_lshl_add_u32 v{VXE}, v8, 4, v7")
    a("v_xor_b32 v8, 4, v8")
    a(f"v_lshl_add_u32 v{VXO}, v8, 4, v7")
    a("v_lshrrev_b32 v7, 4, v1")
    a("v_and_b32 v8, 15, v1")
    a("v_lshlrev_b32 v9, 2, v7")
    a("v_xor_b32 v8, v8, v9")
    a("v_mul_lo_u32 v7, v7, s47")
    a(f"v_lshl_add_u32 v{VW}, v8, 4, v7")
    a("v_cmp_gt_u32 vcc, 14, v8")
    a(f"v_mov_b32 v9, {OOB}")
    a("s_and_b32 s64, s2, 7")
    a(f"v_cndmask_b32 v{VW}, v9, v{VW}, vcc")
    a("s_lshr_b32 s65, s2, 3")
    a("s_lshl_b32 s64, s64, 1")
    a("s_and_b32 s66, s65, 1")
    a("s_or_b32 s64, s64, s66")
    a("s_bfe_u32 s66, s65, 0x20001")
    a("s_lshr_b32 s65, s65, 3")
    a("s_lshl_b32 s67, s64, 7")
    a("s_lshl_b32 s50, s66, 3")
    a("s_add_u32 s67, s67, s50")
    a("s_mul_i32 s50, s67, 450")
    a("s_mul_i32 s65, s65, 58")
    a("s_min_u32 s65, s65, 167")
    a("s_lshl_b32 s67, s65, 1")
    a("s_add_u32 s50, s50, s67")
    a("s_add_u32 s51, s50, 14400")
    a("s_add_u32 s52, s50, 28800")
    a("s_add_u32 s53, s50, 43200")
    a("v_and_b32 v0, 255, v0")
    a("v_lshrrev_b32 v12, 3, v0")
    a("v_and_b32 v13, 7, v0")
    a("v_mul_u32_u24 v10, 450, v13")
    a("v_lshl_add_u32 v10, v12, 2, v10")
    a("v_cmp_gt_u32 vcc, 29, v12")
    a("v_lshlrev_b32 v11, 14, v12")
    a("v_lshl_add_u32 v11, v13, 4, v11")
    a("v_cndmask_b32 v10, v9, v10, vcc")
    a("v_cndmask_b32 v11, v9, v11, vcc")
    a("s_lshl_b32 s67, s65, 13")
    a("s_lshl_b32 s64, s64, 9")
    a("v_add_u32 v14, 8192, v11")
    a("s_add_u32 s64, s64, s67")
    a("s_lshl_b32 s66, s66, 7")
    a("s_add_u32 s64, s64, s66")
    a(f"s_add_u32 s64, s64, {WT}")
    a("s_waitcnt lgkmcnt(0)")
    st.stamp()
    a("s_cmp_eq_u32 s16, 3")
    a("s_cselect_b32 s48, s8, s4")
    a("s_cselect_b32 s49, s9, s5")
    srd(a, 20, "s48", "s49", S*D*2)
    a("s_mul_i32 s66, s16, 896")
    a("s_mul_i32 s67, s18, 224")
    a("s_add_u32 s66, s66, s67")
    a("s_cmp_eq_u32 s16, 3")
    a("s_cselect_b32 s66, s67, s66")
    a("s_cselect_b32 s48, s42, s6")
    a("s_cselect_b32 s49, s43, s7")
    a(f"s_mov_b32 s67, {448*2688}")
    a(f"s_cselect_b32 s67, {448*896}, s67")
    a("s_add_u32 s48, s48, s66")
    a("s_addc_u32 s49, s49, 0")
    a("s_sub_u32 s67, s67, s66")
    srd(a, 24, "s48", "s49", "s67")

    def dma_chunk(c):
        so = (c % 5) * 32768
        for u in range(4):
            a(f"s_add_u32 m0, s55, {so + u*1024}")
            a("s_nop 0" if u == 0 else f"s_add_u32 s{56+u-1}, s{56+u-1}, 128")
            a(f"buffer_load_dwordx4 v{VXE if u % 2 == 0 else VXO}, s[20:23], s{56+u} offen{LDNT} lds")
        for u in range(4):
            a(f"s_add_u32 m0, s55, {so + 16384 + u*1024}")
            a("s_add_u32 s59, s59, 128" if u == 0 else f"s_add_u32 s{60+u-1}, s{60+u-1}, s46")
            a(f"buffer_load_dwordx4 v{VW}, s[24:27], s{60+u} offen{LDNT} lds")
        a("s_add_u32 s63, s63, s46")
    issued_wt = [False]
    for c in range(PRE): dma_chunk(c)
    st.stamp()
    srd(a, 32, "s12", "s13", S*225*2)
    srd(a, 36, "s14", "s15", S*225*2)
    srd(a, 28, "s10", "s11", WS_USED)
    a("s_mov_b32 s70, 0x05040100")
    a("s_mov_b32 s71, 0x07060302")
    def wt_loads():
        so = ["s50", "s51", "s52", "s53"]
        for part in range(2):
            for b in range(4):
                a(f"buffer_load_dword v{WTR + part*4 + b}, v10, s[{32+4*part}:{35+4*part}], {so[b]} offen{LDNT}")
    def wt_out():
        for b in range(4):
            a(f"v_perm_b32 v{WTR+8+b}, v{WTR+4+b}, v{WTR+b}, s70")
            a(f"v_perm_b32 v{WTR+12+b}, v{WTR+4+b}, v{WTR+b}, s71")
        a(f"buffer_store_dwordx4 {vr(WTR+8,4)}, v11, s[28:31], s64 offen{STNT}")
        a(f"buffer_store_dwordx4 {vr(WTR+12,4)}, v14, s[28:31], s64 offen{STNT}")
    issued = PRE
    for c in range(7):
        wtl = 8 if (c > 7 - PRE - 1 + 0 and issued_wt[0]) else 0
        younger = (issued - 1 - c) * 8 + (8 if issued_wt[0] else 0)
        a(f"s_waitcnt vmcnt({younger})")
        a("s_barrier")
        if c in (0, 3): st.stamp()
        if issued < 7 and issued - 5 <= c - 2 + 0 + 0 or (issued < 5):
            dma_chunk(issued); issued += 1
        elif issued < 7:
            pass
        if issued == 7 and not issued_wt[0]:
            wt_loads(); issued_wt[0] = True
    assert issued == 7
    a("s_waitcnt vmcnt(0)")
    wt_out()
    st.finish()
    a("s_endpgm")
    a.label("k1_cons")
    st.n = 1
    if PF:
        a("s_load_dwordx2 s[44:45], s[0:1], 16")
        a("s_getpc_b64 s[46:47]")
        a("s_add_u32 s46, s46, TG@rel32@lo+4")
        a("s_addc_u32 s47, s47, TG@rel32@hi+12")
        a("s_getpc_b64 s[48:49]")
        a("s_add_u32 s48, s48, TB2@rel32@lo+4")
        a("s_addc_u32 s49, s49, TB2@rel32@hi+12")
        a("s_lshl_b32 s50, s2, 12")
        a("s_lshl_b32 s51, s19, 10")
        a("s_add_u32 s50, s50, s51")
        a("v_lshlrev_b32 v4, 4, v1")
    if PF2:
        a("s_lshr_b32 s56, s2, 3")
        a("s_and_b32 s57, s2, 1")
        a("s_lshl_b32 s58, s57, 10")
        a("s_lshl_b32 s59, s56, 5")
        a("s_add_u32 s58, s58, s59")
        a("s_lshl_b32 s59, s56, 6")
        a("s_lshl_b32 s60, s57, 5")
        a("s_add_u32 s59, s59, s60")
        a("s_cmp_eq_u32 s16, 3")
        a("s_cselect_b32 s58, s59, s58")
        a("s_mov_b32 s61, 2688")
        a("s_cselect_b32 s61, 896, s61")
        a("s_mul_i32 s58, s58, 896")
        a("s_mul_i32 s59, s19, 7168")
        a("s_add_u32 s58, s58, s59")
        a("s_mul_i32 s59, s56, 14")
        a("s_add_u32 s59, s59, s19")
        a("s_mul_i32 s59, s59, s61")
        a("s_mul_i32 s60, s16, 896")
        a("s_cmp_eq_u32 s16, 3")
        a("s_cselect_b32 s60, 0, s60")
        a("s_add_u32 s59, s59, s60")
        a("s_lshl_b32 s61, s61, 2")
        a(f"v_mov_b32 v5, {OOB}")
        a("v_cmp_gt_u32 vcc, 56, v1")
        a("v_lshlrev_b32 v6, 4, v1")
        a("s_nop 0")
        a("v_cndmask_b32 v5, v5, v6, vcc")
    a("s_waitcnt lgkmcnt(0)")
    st.stamp()
    if PF2:
        a("s_cmp_eq_u32 s16, 3")
        a("s_cselect_b32 s62, s8, s4")
        a("s_cselect_b32 s63, s9, s5")
        srd(a, 24, "s62", "s63", S*D*2)
        a("s_cselect_b32 s62, s42, s6")
        a("s_cselect_b32 s63, s43, s7")
        a(f"s_mov_b32 s64, {448*2688}")
        a(f"s_cselect_b32 s64, {448*896}, s64")
        srd(a, 32, "s62", "s63", "s64")
        for k in range(7):
            if k == 4: a("s_add_u32 s58, s58, 4096")
            a(f"buffer_load_dwordx4 {vr(216+4*k,4)}, v6, s[24:27], s58 offen offset:{(k%4)*1024}{LDNT}")
        for k in range(4):
            a(f"buffer_load_dwordx4 {vr(200+4*k,4)}, v5, s[32:35], s59 offen{LDNT}")
            if k < 3: a("s_add_u32 s59, s59, s61")
    if PF:
        a(f"s_mov_b32 s52, {16*28*1024}")
        a("s_cmp_lt_u32 s2, 112")
        a("s_cbranch_scc1 k1_pf")
        a("s_mov_b32 s46, s44")
        a("s_mov_b32 s47, s45")
        a(f"s_sub_u32 s50, s50, {112*4096}")
        a(f"s_mov_b32 s52, {448*896}")
        a("s_cmp_lt_u32 s2, 210")
        a("s_cbranch_scc1 k1_pf")
        a("s_mov_b32 s46, s48")
        a("s_mov_b32 s47, s49")
        a(f"s_sub_u32 s50, s50, {98*4096}")
        a("s_mov_b32 s52, 63488")
        a.label("k1_pf")
        srd(a, 20, "s46", "s47", "s52")
        a(f"buffer_load_dwordx4 {vr(196,4)}, v4, s[20:23], s50 offen")
    srd(a, 28, "s10", "s11", WS_USED)
    a("s_lshr_b32 s68, s19, 1")
    a("s_and_b32 s69, s19, 1")
    a("v_lshrrev_b32 v7, 1, v2")
    a("v_and_b32 v7, 7, v7")
    a("s_lshl_b32 s70, s68, 13")
    a("v_lshlrev_b32 v8, 7, v2")
    a("v_add_u32 v8, s70, v8")
    for k in range(4):
        a(f"v_add_u32 v9, {2*k}, v3")
        a("v_xor_b32 v9, v9, v7")
        a(f"v_lshl_add_u32 v{XB+k}, v9, 4, v8")
        a(f"v_add_u32 v{XB+4+k}, 0x10000, v{XB+k}")
        a(f"v_add_u32 v{XB+8+k}, 0x20000, v{XB+k}")
    a("v_and_b32 v7, 15, v1")
    a("v_lshrrev_b32 v7, 2, v7")
    a("v_and_b32 v8, 3, v1")
    a("v_bfe_u32 v9, v1, 4, 1")
    a("v_lshlrev_b32 v9, 5, v9")
    a("v_lshl_add_u32 v8, v8, 3, v9")
    a("s_mul_i32 s70, s69, 112")
    a("v_add_u32 v8, s70, v8")
    a("v_lshl_add_u32 v9, v3, 3, v7")
    a("v_lshlrev_b32 v9, 8, v9")
    a("v_lshlrev_b32 v7, 2, v7")
    for g in range(2):
        a(f"v_add_u32 v12, {56*g}, v8")
        a("v_lshrrev_b32 v13, 4, v12")
        a("v_xor_b32 v13, v13, v7")
        a("v_and_b32 v12, 15, v12")
        a("v_lshl_add_u32 v13, v13, 4, v12")
        a(f"v_add_u32 v{WB+g}, v13, v9")
        a(f"v_add_u32 v{WB+2+g}, 0x10000, v{WB+g}")
        a(f"v_add_u32 v{WB+4+g}, 0x20000, v{WB+g}")
    for r in range(64):
        a(f"v_mov_b32 v{ACC+r}, 0")

    def reads(t):
        c, k = t // 4, t % 4
        slot = c % 5
        st_ = slot >> 1; so = (slot & 1) * 32768
        b = t % 2
        for tbi in range(2):
            a(f"ds_read_b128 {vr(XA+8*b+4*tbi,4)}, v{XB+4*st_+k} offset:{so+tbi*4096}")
        for g in range(2):
            o = so + 16384 + k*4096
            a(f"ds_read_b64_tr_b16 {vr(WA+8*b+4*g,2)}, v{WB+2*st_+g} offset:{o}")
            a(f"ds_read_b64_tr_b16 {vr(WA+8*b+4*g+2,2)}, v{WB+2*st_+g} offset:{o+1024}")

    def chunk_wait(c):
        a("s_barrier")
        if c in (0, 1, 2, 3, 4, 6): st.stamp()

    def mainloop(order):
        chunk_wait(0)
        reads(0)
        for t in range(28):
            if t + 1 < 28:
                if (t + 1) % 4 == 0:
                    chunk_wait((t + 1) // 4)
                reads(t + 1)
                a("s_waitcnt lgkmcnt(6)")
            else:
                a("s_waitcnt lgkmcnt(0)")
            b = t % 2
            for tbi in range(2):
                for g in range(2):
                    x = vr(XA+8*b+4*tbi, 4); w = vr(WA+8*b+4*g, 4); d = vr(ACC+16*(2*tbi+g), 16)
                    if order == "WX":
                        a(f"v_mfma_f32_32x32x16_bf16 {d}, {w}, {x}, {d}")
                    else:
                        a(f"v_mfma_f32_32x32x16_bf16 {d}, {x}, {w}, {d}")
        st.stamp()

    a("s_lshl_b32 s71, s17, 2")
    a("s_lshl_b32 s72, s68, 1")
    a("s_add_u32 s71, s71, s72")
    a("s_lshl_b32 s72, s18, 2")
    a("s_lshl_b32 s73, s69, 1")
    a("s_add_u32 s72, s72, s73")
    n_save = st.n
    a("s_cmp_ge_u32 s16, 2")
    a("s_cbranch_scc1 k1_vb")
    mainloop("WX")
    a("s_mov_b32 s66, 0")
    a("s_mov_b32 s67, -1")
    a(f"s_mov_b32 s68, {f2u(CQ):#x}")
    a("s_cmp_eq_u32 s16, 0")
    a("s_cselect_b32 s68, s68, 1.0")
    a("s_mov_b32 s69, s68")
    a("s_cmp_eq_u32 s16, 1")
    a("s_cselect_b64 s[44:45], s[66:67], 0")
    a("s_lshl_b32 s70, s72, 6")
    a("s_add_u32 s70, s70, s71")
    a("s_lshl_b32 s70, s70, 11")
    a("s_lshl_b32 s73, s16, 21")
    a("s_add_u32 s70, s70, s73")
    a("v_lshlrev_b32 v4, 4, v1")
    a("v_mov_b32 v5, 1.0")
    a("s_nop 2")
    for tbi in range(2):
        for g in range(2):
            ti = 2*tbi + g
            d = ACC + 16*ti
            for r in range(0, 16, 2):
                a(f"v_pk_mul_f32 {vr(d+r,2)}, {vr(d+r,2)}, s[68:69]")
            for r in range(12, 16):
                a(f"v_cndmask_b32 v{d+r}, v{d+r}, 0, s[66:67]")
            n = 100 + 2*ti + 12
            a(f"v_pk_mul_f32 {vr(n,2)}, {vr(d,2)}, {vr(d,2)}")
            for r in range(2, 16, 2):
                a(f"v_pk_fma_f32 {vr(n,2)}, {vr(d+r,2)}, {vr(d+r,2)}, {vr(n,2)}")
            a(f"v_cndmask_b32 v{d+12}, v{d+12}, v5, s[44:45]")
            a(f"v_add_f32 v{n}, v{n}, v{n+1}")
            for q in range(8):
                a(f"v_cvt_pk_bf16_f32 v{P+8*ti+q}, v{d+2*q}, v{d+2*q+1}")
            off = g*131072 + tbi*2048
            a(f"s_add_u32 s73, s70, {off}")
            a(f"buffer_store_dwordx4 {vr(P+8*ti,4)}, v4, s[28:31], s73 offen{STNT}")
            a(f"buffer_store_dwordx4 {vr(P+8*ti+4,4)}, v4, s[28:31], s73 offen offset:1024{STNT}")
    N0 = 112
    for ti in range(4):
        a(f"v_mov_b32 v{N0+2*ti+1}, v{N0+2*ti}")
    a("s_nop 0")
    for ti in range(4):
        a(f"v_permlane32_swap_b32 v{N0+2*ti}, v{N0+2*ti+1}")
    for ti in range(4):
        a(f"v_add_f32 v{N0+2*ti}, v{N0+2*ti}, v{N0+2*ti+1}")
    for sh in (1, 2, 4, 8):
        for ti in range(4):
            a(f"v_max_f32_dpp v{N0+2*ti}, v{N0+2*ti}, v{N0+2*ti} row_shr:{sh} row_mask:0xf bank_mask:0xf")
    for ti in range(4):
        a(f"v_readlane_b32 s{56+2*ti}, v{N0+2*ti}, 15")
        a(f"v_readlane_b32 s{57+2*ti}, v{N0+2*ti}, 31")
    a("s_nop 1")
    for ti in range(4):
        a(f"s_max_u32 s{56+2*ti}, s{56+2*ti}, s{57+2*ti}")
    for ti in range(4):
        a(f"v_writelane_b32 v110, s{56+2*ti}, {ti}")
    a("s_lshl_b32 s70, s16, 4")
    a("s_add_u32 s70, s70, s72")
    a("s_lshl_b32 s70, s70, 8")
    a("s_lshl_b32 s73, s71, 2")
    a("s_add_u32 s70, s70, s73")
    a(f"s_add_u32 s70, s70, {NRM}")
    a("v_and_b32 v4, 1, v1")
    a("v_lshlrev_b32 v4, 8, v4")
    a("v_lshrrev_b32 v6, 1, v1")
    a("v_lshl_add_u32 v4, v6, 2, v4")
    a(f"v_mov_b32 v5, {OOB}")
    a("v_cmp_gt_u32 vcc, 4, v1")
    a("s_nop 1")
    a("v_cndmask_b32 v4, v5, v4, vcc")
    a("buffer_store_dword v110, v4, s[28:31], s70 offen")
    a("s_branch k1_fin")
    a.label("k1_vb")
    st.n = n_save
    mainloop("XW")
    a("s_cmp_eq_u32 s16, 3")
    a("s_cbranch_scc1 k1_b1")
    a("v_mov_b32 v5, 0x3f803f80")
    a("v_cmp_eq_u32 vcc, 28, v2")
    a("v_mov_b32 v6, 0")
    a("v_cmp_lt_u32 s[44:45], 27, v2")
    a("s_lshl_b32 s70, s72, 6")
    a("v_cndmask_b32 v6, v6, v5, vcc")
    a("s_add_u32 s70, s70, s71")
    a("s_lshl_b32 s70, s70, 11")
    a(f"s_add_u32 s70, s70, {VF}")
    a("v_lshlrev_b32 v4, 4, v1")
    a("s_nop 3")
    for tbi in range(2):
        for g in range(2):
            ti = 2*tbi + g
            d = ACC + 16*ti
            for q in range(8):
                a(f"v_cvt_pk_bf16_f32 v{P+8*ti+q}, v{d+2*q}, v{d+2*q+1}")
            for q in range(8):
                a(f"v_cndmask_b32 v{P+8*ti+q}, v{P+8*ti+q}, v6, s[44:45]")
            off = g*131072 + tbi*2048
            a(f"s_add_u32 s73, s70, {off}")
            a(f"buffer_store_dwordx4 {vr(P+8*ti,4)}, v4, s[28:31], s73 offen{STNT}")
            a(f"buffer_store_dwordx4 {vr(P+8*ti+4,4)}, v4, s[28:31], s73 offen offset:1024{STNT}")
    a("s_branch k1_fin")
    a.label("k1_b1")
    a("v_lshlrev_b32 v4, 12, v2")
    a("v_lshl_add_u32 v4, v3, 4, v4")
    a(f"v_mov_b32 v5, {OOB}")
    a("v_cmp_gt_u32 vcc, 28, v2")
    a("s_mul_i32 s70, s72, 28*4096")
    a("s_lshl_b32 s73, s71, 6")
    a("v_cndmask_b32 v4, v5, v4, vcc")
    a("s_add_u32 s70, s70, s73")
    a(f"s_add_u32 s70, s70, {ZF}")
    a("s_nop 3")
    for tbi in range(2):
        for g in range(2):
            ti = 2*tbi + g
            d = ACC + 16*ti
            for q in range(8):
                a(f"v_cvt_pk_bf16_f32 v{P+8*ti+q}, v{d+2*q}, v{d+2*q+1}")
            off = g*28*4096 + tbi*64
            a(f"s_add_u32 s73, s70, {off}")
            a(f"buffer_store_dwordx4 {vr(P+8*ti,4)}, v4, s[28:31], s73 offen{STNT}")
            a(f"buffer_store_dwordx4 {vr(P+8*ti+4,4)}, v4, s[28:31], s73 offen offset:32{STNT}")
    a.label("k1_fin")
    st.finish()
    a.label("k1_end")
    a("s_endpgm")

def desc(name, vgpr, sgpr=102):
    return f""".section .rodata,"a"
.p2align 6
.amdhsa_kernel {name}
  .amdhsa_next_free_vgpr {vgpr}
  .amdhsa_next_free_sgpr {sgpr}
  .amdhsa_accum_offset {(vgpr+3)//4*4}
  .amdhsa_group_segment_fixed_size 0
  .amdhsa_kernarg_size 72
  .amdhsa_user_sgpr_count 2
  .amdhsa_user_sgpr_kernarg_segment_ptr 1
  .amdhsa_system_sgpr_workgroup_id_x 1
  .amdhsa_float_denorm_mode_32 3
.end_amdhsa_kernel
"""
```

```python
from asmlib import *
from common import *
import stamps
from k1 import srd

OPB = 456*128
TRB = OPB
K3_LDS = OPB + 16384
XWIN = 8
OUTNT = ''
OOB = "0x40000000"

class VM:
    def __init__(self, a): self.a = a; self.ops = []
    def issue(self, tag): self.ops.append(tag)
    def wait(self, tags):
        idx = max(self.ops.index(t) for t in tags)
        n = len(self.ops) - 1 - idx
        self.a(f"s_waitcnt vmcnt({min(n, 63)})")

def gen_k3(a):
    X0 = 16; ACC = 144; WF = 176
    a.label("k3_kernel")
    a("s_cmp_ge_u32 s2, 256")
    a("s_cbranch_scc1 k3_end")
    st = stamps.St(a, 2, "s19", "s8", "s9")
    st.start()
    a("s_load_dwordx2 s[4:5], s[0:1], 16")
    a("s_load_dwordx2 s[6:7], s[0:1], 48")
    a("s_load_dwordx2 s[8:9], s[0:1], 64")
    a("s_getpc_b64 s[10:11]")
    a("s_add_u32 s10, s10, TG@rel32@lo+4")
    a("s_addc_u32 s11, s11, TG@rel32@hi+12")
    a("s_and_b32 s40, s2, 7")
    a("s_lshr_b32 s41, s2, 3")
    a("s_lshr_b32 s16, s40, 2")
    a("s_and_b32 s17, s40, 3")
    a("v_lshrrev_b32 v4, 6, v0")
    a("v_and_b32 v1, 63, v0")
    a("v_readfirstlane_b32 s19, v4")
    a("v_and_b32 v2, 31, v1")
    a("v_lshrrev_b32 v3, 5, v1")
    a("v_lshrrev_b32 v6, 3, v1")
    a("v_and_b32 v7, 7, v1")
    a("v_bfe_u32 v8, v1, 4, 1")
    a("v_lshlrev_b32 v8, 2, v8")
    a("v_xor_b32 v7, v7, v8")
    a("v_and_b32 v9, 15, v1")
    a("v_lshrrev_b32 v9, 2, v9")
    a("v_and_b32 v10, 3, v1")
    a("v_bfe_u32 v11, v1, 4, 1")
    a("v_lshlrev_b32 v11, 5, v11")
    a("v_lshl_add_u32 v10, v10, 3, v11")
    a("v_bfe_u32 v11, v9, 1, 1")
    a("v_lshlrev_b32 v11, 2, v11")
    a("v_lshlrev_b32 v4, 4, v1")
    a("s_lshl_b32 s55, s19, 10")
    a("s_cmp_eq_u32 s16, 1")
    a("s_cbranch_scc1 k3_b3")
    n_save = st.n

    def trbases(gstride, rowshift):
        a(f"v_lshl_add_u32 v12, v3, {rowshift}, v9")
        a("v_lshlrev_b32 v12, 7, v12")
        for g in range(2):
            a(f"v_add_u32 v13, {gstride*g}, v10")
            a("v_lshrrev_b32 v20, 4, v13")
            a("v_xor_b32 v20, v20, v11")
            a("v_and_b32 v13, 15, v13")
            a("v_lshl_add_u32 v20, v20, 4, v13")
            a(f"v_add_u32 v{14+g}, v20, v12")

    def body(nks, stage_of, stage_rounds, roff, order, xload, dstep):
        vm = VM(a)
        def D(t):
            a("buffer_load_dwordx4 v5, s[24:27], s53 offen lds")
            vm.issue(("d", t))
            if t < 13:
                a(f"s_add_u32 s53, s53, {dstep}")
                a("s_add_u32 m0, m0, 4096")
        def X(n):
            xload(n); vm.issue(("x", n))
        a("s_mov_b32 m0, s55")
        a("s_nop 0")
        D(0); X(0); D(1); X(1); X(2); X(3)
        for t in range(2, 6): D(t); X(t + 2)
        for t in range(6, 14):
            D(t)
            a("s_nop 0")
        nx = 8
        seq = [(ks, g) for ks in range(nks) for g in range(2)]
        DEPTH = 4
        def buf(idx): return WF + 4*(idx % DEPTH)
        cur = [-1]; issued = [0]
        def stage_wait(si):
            vm.wait([("d", stage_rounds[si] - 1)])
            a("s_barrier")
            if si in (0, 3): st.stamp()
        def try_issue(upto):
            while issued[0] < min(upto, len(seq)):
                ks, g = seq[issued[0]]
                if stage_of(ks) != cur[0]:
                    cur[0] = stage_of(ks)
                    stage_wait(cur[0])
                o1, o2 = roff(ks)
                b = buf(issued[0])
                a(f"ds_read_b64_tr_b16 {vr(b,2)}, v{14+g} offset:{o1}")
                a(f"ds_read_b64_tr_b16 {vr(b+2,2)}, v{14+g} offset:{o2}")
                issued[0] += 1
        try_issue(DEPTH - 1)
        for idx, (ks, g) in enumerate(seq):
            if g == 0:
                if nx < nks:
                    X(nx); nx += 1
                vm.wait([("x", ks)])
            out = issued[0] - idx - 1
            a(f"s_waitcnt lgkmcnt({2*out})")
            x = vr(X0+4*ks, 4); w = vr(buf(idx), 4); d = vr(ACC+16*g, 16)
            c = "0" if ks == 0 else d
            a(f"v_mfma_f32_32x32x16_bf16 {d}, {w}, {x}, {c}" if order == "WX" else f"v_mfma_f32_32x32x16_bf16 {d}, {x}, {w}, {c}")
            try_issue(idx + DEPTH)
        st.stamp()

    EA = 192
    def epi_addr(magic, per, rowshift):
        a("s_lshl_b32 s22, s19, 12")
        a(f"s_add_u32 s22, s22, {TRB}")
        a(f"v_mov_b32 v21, {magic}")
        for k in range(4):
            a(f"v_add_u32 v22, {64*k}, v1")
            a("v_mul_u32_u24 v23, v22, v21")
            a("v_lshrrev_b32 v23, 16, v23")
            a(f"v_mul_u32_u24 v24, {per}, v23")
            a("v_sub_u32 v24, v22, v24")
            a(f"v_lshlrev_b32 v25, {rowshift}, v23")
            a("v_lshl_add_u32 v25, v24, 4, v25")
            a(f"v_add_u32 v{EA+k}, s22, v25")
            a("v_mul_u32_u24 v25, 0x700, v23")
            a(f"v_lshl_add_u32 v{EA+4+k}, v24, 4, v25")
        a(f"v_mov_b32 v22, {OOB}")
        a("v_cmp_gt_u32 vcc, 32, v1")
        a("s_nop 1")
        a(f"v_cndmask_b32 v{EA+7}, v22, v{EA+7}, vcc")
    a("s_lshl_b32 s20, s17, 2")
    a("s_and_b32 s21, s41, 3")
    a("s_add_u32 s20, s20, s21")
    a("s_lshr_b32 s21, s41, 2")
    a("s_lshl_b32 s22, s20, 2")
    a("s_add_u32 s22, s22, s19")
    a("s_lshl_b32 s46, s22, 15")
    a(f"s_add_u32 s46, s46, {OF}")
    a("s_movk_i32 s47, 896")
    a("v_mul_lo_u32 v5, v6, s47")
    a("v_lshl_add_u32 v5, v7, 4, v5")
    a("v_cmp_gt_u32 vcc, 7, v7")
    a(f"v_mov_b32 v8, {OOB}")
    a("s_mul_i32 s53, s19, 8*896")
    a("v_cndmask_b32 v5, v8, v5, vcc")
    a("v_mov_b32 v8, 0")
    a("v_lshlrev_b32 v12, 2, v0")
    a(f"ds_write_b32 v12, v8 offset:{448*128}")
    trbases(56, 2)
    epi_addr(9363, 7, 7)
    a("s_waitcnt lgkmcnt(0)")
    st.stamp()
    srd(a, 28, "s8", "s9", WS_USED)
    a("s_mul_i32 s22, s21, 112")
    a("s_add_u32 s24, s4, s22")
    a("s_addc_u32 s25, s5, 0")
    a(f"s_sub_u32 s23, {448*896}, s22")
    srd(a, 24, "s24", "s25", "s23")
    def xa(n):
        if n % 4 == 0 and n > 0: a("s_add_u32 s46, s46, 4096")
        a(f"buffer_load_dwordx4 {vr(X0+4*n,4)}, v4, s[28:31], s46 offen offset:{(n%4)*1024}")
    def stA(k):
        rows = min(448, 28*(k//2) + 16*(k % 2) + 16)
        return 0 if rows <= 64 else 1 if rows <= 192 else 2 if rows <= 320 else 3
    body(32, stA, [2, 6, 10, 14], lambda k: ((28*(k//2)+16*(k % 2))*128, (28*(k//2)+16*(k % 2)+8)*128), "WX", xa, 32*896)
    srd(a, 32, "s6", "s7", S*896*2)
    a("s_lshl_b32 s22, s19, 12")
    a(f"s_add_u32 s22, s22, {TRB}")
    a("v_lshlrev_b32 v5, 7, v2")
    a("v_lshl_add_u32 v5, v3, 3, v5")
    a("v_add_u32 v5, s22, v5")
    a("s_nop 4")
    for g in range(2):
        d = ACC + 16*g
        for q in range(8):
            a(f"v_cvt_pk_bf16_f32 v{X0+8*g+q}, v{d+2*q}, v{d+2*q+1}")
    a("s_mov_b64 s[44:45], exec")
    for g in range(2):
        for q in range(4):
            if q == 3: a("s_mov_b32 exec_hi, 0")
            a(f"ds_write_b64 v5, {vr(X0+8*g+2*q,2)} offset:{56*g+16*q}")
            if q == 3: a("s_mov_b32 exec_hi, -1")
    a("s_lshl_b32 s23, s20, 7")
    a("s_lshl_b32 s24, s19, 5")
    a("s_add_u32 s23, s23, s24")
    a("s_mul_i32 s45, s23, 1792")
    a("s_mul_i32 s23, s21, 112")
    a("s_add_u32 s45, s45, s23")
    a("s_waitcnt lgkmcnt(0)")
    for k in range(4):
        a(f"ds_read_b128 {vr(48+4*k,4)}, v{EA+k}")
    for k in range(4):
        a(f"s_waitcnt lgkmcnt({3-k})")
        a(f"buffer_store_dwordx4 {vr(48+4*k,4)}, v{EA+4+k}, s[32:35], s45 offen{OUTNT}")
    st.finish()
    a("s_endpgm")
    a.label("k3_b3")
    st.n = n_save
    a("s_lshl_b32 s20, s17, 3")
    a("s_and_b32 s21, s41, 7")
    a("s_add_u32 s20, s20, s21")
    a("s_lshr_b32 s21, s41, 3")
    a("s_lshl_b32 s22, s21, 2")
    a("s_add_u32 s22, s22, s19")
    a("s_mul_i32 s46, s22, 28*1024")
    a("v_lshlrev_b32 v5, 12, v6")
    a("v_lshl_add_u32 v5, v7, 4, v5")
    a("s_lshl_b32 s53, s19, 15")
    trbases(64, 3)
    epi_addr(4682, 14, 8)
    a("s_waitcnt lgkmcnt(0)")
    st.stamp()
    a("s_lshl_b32 s22, s20, 7")
    a(f"s_add_u32 s22, s22, {ZT}")
    a("s_add_u32 s24, s8, s22")
    a("s_addc_u32 s25, s9, 0")
    a(f"s_sub_u32 s23, {WS_USED}, s22")
    srd(a, 24, "s24", "s25", "s23")
    srd(a, 36, "s10", "s11", 16*28*1024)
    def xb(n):
        if n % 4 == 0 and n > 0: a("s_add_u32 s46, s46, 4096")
        a(f"buffer_load_dwordx4 {vr(X0+4*n,4)}, v4, s[36:39], s46 offen offset:{(n%4)*1024}")
    def stB(k):
        rows = 16*k + 16
        return 0 if rows <= 64 else 1 if rows <= 192 else 2 if rows <= 320 else 3
    body(28, stB, [2, 6, 10, 14], lambda k: (16*k*128, (16*k+4)*128), "XW", xb, 32*4096)
    srd(a, 32, "s6", "s7", S*896*2)
    a("s_mul_i32 s22, s19, 56")
    a(f"s_add_u32 s22, s22, {TRB}")
    a("v_lshlrev_b32 v5, 8, v2")
    a("v_lshl_add_u32 v5, v3, 3, v5")
    a("v_add_u32 v5, s22, v5")
    a("s_nop 5")
    for g in range(2):
        d = ACC + 16*g
        for q in range(8):
            a(f"v_cvt_pk_bf16_f32 v{X0+8*g+q}, v{d+2*q}, v{d+2*q+1}")
    for g in range(2):
        for q in range(4):
            if q == 3: a("s_mov_b32 exec_hi, 0")
            a(f"ds_write_b64 v5, {vr(X0+8*g+2*q,2)} offset:{8192*g+16*q}")
            if q == 3: a("s_mov_b32 exec_hi, -1")
    a("s_lshl_b32 s23, s20, 6")
    a("s_lshl_b32 s24, s19, 4")
    a("s_add_u32 s23, s23, s24")
    a("s_mul_i32 s45, s23, 1792")
    a("s_mul_i32 s23, s21, 224")
    a("s_add_u32 s45, s45, s23")
    a("s_add_u32 s45, s45, 896")
    a("s_waitcnt lgkmcnt(0)")
    a("s_barrier")
    for k in range(4):
        a(f"ds_read_b128 {vr(48+4*k,4)}, v{EA+k}")
    for k in range(4):
        a(f"s_waitcnt lgkmcnt({3-k})")
        a(f"buffer_store_dwordx4 {vr(48+4*k,4)}, v{EA+4+k}, s[32:35], s45 offen{OUTNT}")
    st.finish()
    a.label("k3_end")
    a("s_endpgm")
```

```python
import sys
from asmlib import *
from common import *
import k1, k2, k3, tables
def stamps_on():
    import stamps
    return stamps.ENABLED
NAME = "concat_heads__softmax_full_mha__spectral_gfnet__prompt"
def build(which=("k1","k2","k3"), order=None):
    hdr = open("cdna_kernels/%s.s.ref" % NAME).read().split("\n")
    head = [l for l in hdr[:12] if l.startswith(";") and "@launch" not in l and "Override" not in l and "grid=ceil" not in l]
    out = head[:]
    launches = []
    if "k1" in which: launches.append("; @launch kernel=k1_kernel grid=(256,1,1) block=(512,1,1) lds=%d" % k1.K1_LDS)
    if "k2" in which: launches.append("; @launch kernel=k2_kernel grid=(256,1,1) block=(512,1,1) lds=%d" % k2.K2_LDS)
    if "k3" in which: launches.append("; @launch kernel=k3_kernel grid=(256,1,1) block=(256,1,1) lds=%d" % k3.K3_LDS)
    if order:
        m = {"k1": launches[0], "k2": launches[1], "k3": launches[2]}
        launches = [m[x] for x in order]
    out += launches
    out.append('.amdgcn_target "amdgcn-amd-amdhsa--gfx950"')
    errs = []
    descs = []
    body = []
    for nm, fn, vg in (("k1", k1.gen_k1, 256 if stamps_on() else 244), ("k2", k2.gen_k2, 256), ("k3", k3.gen_k3, 256 if stamps_on() else 200)):
        if nm not in which: continue
        a = Asm()
        fn(a)
        errs += check(a.L, nm)
        for lp in getattr(a, "loops", []):
            errs += check(lp + lp, nm + "-loop")
        body.append(".text\n.globl %s_kernel\n.p2align 8\n.type %s_kernel,@function\n" % (nm, nm) + a.text())
        descs.append(k1.desc(nm + "_kernel", vg))
    txt = "\n".join(out) + "\n" + "\n".join(body) + "\n" + "\n".join(descs) + tables.gen_tables() + tables.gen_tb2()
    return txt, errs
if __name__ == "__main__":
    import stamps
    if len(sys.argv) > 2 and sys.argv[2] == "stamp": stamps.ENABLED = True
    order = None
    for x in sys.argv[3:]:
        if x.startswith("order="): order = x[6:].split(",")
        if x == "nopf": k1.PF = False
        if x.startswith("pre="): k1.PRE = int(x[4:])
        if x.startswith("flip="): k2.FLIP = int(x[5:])
        if x.startswith("nbm="): k2.NBM = int(x[4:])
        if x.startswith("b2p="): k2.B2PRIO = int(x[4:])
        if x.startswith("w3p="): k2.W3PRIO = int(x[4:])
        if x == "nokvpf": k2.KVPF = False
        if x == "ld0": k1.LDNT = ""
        if x == "stnt": k1.STNT = " nt"
        if x == "stsc": k1.STNT = " sc0 sc1"
        if x == "nopf2": k1.PF2 = False
        if x == "outnt": k3.OUTNT = " nt"
        if x == "nocpf":
            import asmlib; asmlib.CODEPF = False
        if x == "dbgt":
            import stamps as _st; _st.DBGT = True
        if x.startswith("fine="):
            import stamps as _st; _st.DBGK = int(x[5]); _st.WSEL = int(x[7:]) if len(x) > 6 else 0
        if x == "nopf3": k1.PF3 = False
        if x == "pfnt": k1.PFNT = " nt"
        if x == "noxbnt": k1.XBNT = False
        if x == "nowtnt": k1.WTNT = ""
        if x == "nomallpf": k1.PF = False
        if x == "nob2":
            k2.WITH_B2 = False
    txt, errs = build(order=order)
    for e in errs: print("HAZARD", e)
    open(sys.argv[1] if len(sys.argv) > 1 else "out.s", "w").write(txt)
    print("written", len(txt))
```

```python
import re

class Asm:
    def __init__(self):
        self.L = []
    def __call__(self, s):
        for ln in s.split("\n"):
            ln = ln.strip()
            if ln:
                self.L.append("    " + ln)
    def label(self, n):
        self.L.append(n + ":")
    def raw(self, s):
        self.L.append(s)
    def c(self, s):
        self.L.append("    ; " + s)
    def text(self):
        return "\n".join(self.L) + "\n"

def vr(a, n=1):
    return f"v{a}" if n == 1 else f"v[{a}:{a+n-1}]"
def sr(a, n=1):
    return f"s{a}" if n == 1 else f"s[{a}:{a+n-1}]"
def ar(a, n=1):
    return f"a{a}" if n == 1 else f"a[{a}:{a+n-1}]"

_reg = re.compile(r"^(-|\|)?([vas])(?:(\d+)|\[(\d+):(\d+)\])\|?$")
def regs(tok):
    tok = tok.strip()
    tok = tok.replace("abs(", "").replace(")", "")
    if tok.startswith("-"): tok = tok[1:]
    tok = tok.strip("|")
    if tok == "vcc": return {"vcc"}
    if tok == "exec": return {"exec"}
    if tok == "m0": return {"m0"}
    m = _reg.match(tok)
    if not m: return set()
    k = m.group(2)
    if m.group(3) is not None:
        return {k + m.group(3)}
    return {k + str(i) for i in range(int(m.group(4)), int(m.group(5)) + 1)}

TRANS = ("v_exp_", "v_log_", "v_rcp_", "v_rsq_", "v_sqrt_", "v_sin_", "v_cos_")

class I:
    def __init__(self, line):
        line = line.split(";")[0].strip()
        self.line = line
        p = line.split(None, 1)
        self.mn = p[0]
        rest = p[1] if len(p) > 1 else ""
        ops = []
        depth = 0; cur = ""
        for ch in rest:
            if ch == "[": depth += 1
            if ch == "]": depth -= 1
            if ch == "," and depth == 0:
                ops.append(cur); cur = ""
            else:
                cur += ch
        if cur.strip(): ops.append(cur)
        self.mods = ""
        if ops:
            last = ops[-1].strip().split()
            if last:
                ops[-1] = last[0]
                self.mods = " ".join(last[1:])
        self.ops = [o.strip() for o in ops]
        mn = self.mn
        self.kind = "other"
        self.w = set(); self.r = set()
        self.states = 1
        R = [regs(o) for o in self.ops]
        if mn == "s_nop":
            self.kind = "nop"; self.states = int(self.ops[0], 0) + 1
        elif mn.startswith("v_mfma"):
            self.kind = "mfma"
            self.w = R[0]; self.A = R[1]; self.B = R[2]; self.C = R[3]
            self.r = R[1] | R[2] | R[3]
            self.passes = 8 if "32x32x16" in mn else (4 if "16x16x32" in mn else 16)
        elif mn.startswith("v_"):
            self.kind = "valu"
            self.trans = mn.startswith(TRANS)
            self.dpp = "_dpp" in mn or "row_" in self.mods or "quad_perm" in self.mods
            self.perm = mn.startswith("v_permlane")
            if mn.startswith("v_cmp"):
                self.w = R[0]; self.r = set().union(*R[1:])
            elif self.perm:
                self.w = R[0] | R[1]; self.r = R[0] | R[1]
            elif mn.startswith(("v_readlane", "v_readfirstlane")):
                self.w = R[0]; self.r = set().union(*R[1:])
            else:
                self.w = R[0]; self.r = set().union(*R[1:]) if len(R) > 1 else set()
                if mn.startswith(("v_fmac", "v_mac", "v_pk_fmac", "v_writelane")) or self.dpp:
                    self.r |= R[0]
                if mn.startswith(("v_add_co", "v_sub_co", "v_addc_co", "v_subb_co")):
                    self.w |= R[1]
                if mn == "v_cndmask_b32" and len(self.ops) == 3:
                    self.r |= {"vcc"}
        elif mn.startswith(("buffer_", "global_")):
            self.kind = "vmem"
            self.lds = "lds" in self.mods.split() or "_lds_" in mn
            if mn.startswith(("buffer_inv", "buffer_wbl2")):
                pass
            elif "load" in mn and not self.lds:
                self.w = R[0]; self.r = set().union(*R[1:])
            elif "store" in mn or "atomic" in mn:
                self.r = set().union(*R)
                self.data = R[0] if mn.startswith("buffer_") else R[1]
                self.wide = "x4" in mn or "x3" in mn
            else:
                self.r = set().union(*R)
        elif mn.startswith("ds_"):
            self.kind = "ds"
            if "read" in mn or "_rtn" in mn or "bpermute" in mn or "swizzle" in mn:
                self.w = R[0]; self.r = set().union(*R[1:])
            else:
                self.r = set().union(*R)
        elif mn.startswith("s_"):
            self.kind = "salu"
            if mn.startswith(("s_cmp", "s_waitcnt", "s_barrier", "s_branch", "s_cbranch", "s_endpgm", "s_setprio", "s_bitcmp", "s_sleep")):
                self.r = set().union(*R) if R else set()
            else:
                self.w = R[0] if R else set()
                self.r = set().union(*R[1:]) if len(R) > 1 else set()
                if "saveexec" in mn:
                    self.w |= {"exec"}; self.r |= {"exec"}

def check(lines, name=""):
    ins = []
    for ln in lines:
        s = ln.split(";")[0].strip()
        if not s or s.endswith(":") or s.startswith("."):
            continue
        ins.append(I(s))
    errs = []
    n = len(ins)
    isv = lambda x: x[0] in "va" and x[1:].isdigit()
    iss = lambda x: (x[0] == "s" and x[1:].isdigit()) or x == "vcc"
    for j in range(n):
        c = ins[j]
        dist = 0
        for i in range(j - 1, max(-1, j - 40), -1):
            p = ins[i]
            need = 0; why = ""
            def req(k, w):
                nonlocal need, why
                if k > need: need, why = k, w
            if p.kind == "valu":
                pv = {x for x in p.w if isv(x)}
                ps = {x for x in p.w if iss(x)}
                if c.kind == "mfma" and pv & c.r: req(2, "VALU->MFMA src")
                if c.kind == "valu":
                    if p.trans and not c.trans and pv & c.r: req(1, "trans->VALU")
                    if (c.perm or c.dpp) and pv & c.r: req(2, "VALU->permlane/DPP")
                    if c.mn.startswith(("v_readlane", "v_readfirstlane")) and pv & c.r: req(1, "VALU->readlane")
                    if ps & c.r:
                        req(2, "VALU sgpr->VALU const")
                        if c.mn.startswith(("v_readlane", "v_writelane")): req(4, "VALU sgpr->lane select")
                if c.kind == "vmem" and ps & c.r: req(5, "VALU sgpr->VMEM")
                if c.kind == "salu" and ps & c.r: req(1, "VALU sgpr->SALU (pad)")
            if p.kind == "mfma":
                P = p.passes
                t = {2: 5, 4: 8, 8: 12, 16: 20}[P]
                if c.kind == "mfma":
                    if p.w & (c.A | c.B): req(t, "MFMA D->MFMA A/B")
                    if p.w & c.C and p.w != c.C: req({2: 4, 4: 6, 8: 10, 16: 18}[P], "MFMA D->MFMA C overlap")
                    if p.w & c.w and p.w != c.w: req({2: 4, 4: 6, 8: 10, 16: 18}[P], "MFMA D->MFMA D overlap")
                elif c.kind in ("valu", "vmem", "ds"):
                    if p.w & (c.r | c.w): req(t, "MFMA D->VALU/VMEM/DS")
                    if c.kind == "valu" and p.C & c.w: req({2: 1, 4: 3, 8: 7, 16: 15}[P], "MFMA C read->VALU write")
            if p.kind == "vmem" and getattr(p, "wide", False):
                if c.kind == "valu" and p.data & c.w: req(2, "wide store data->VALU write")
                elif (c.kind in ("vmem", "ds")) and p.data & c.w: req(1, "wide store data->write")
            if p.kind == "salu" and "m0" in p.w and c.kind == "vmem" and getattr(c, "lds", False): req(1, "M0->LDS DMA")
            if need > dist:
                errs.append(f"{name}: need {need} states ({why}), have {dist}: [{p.line}] -> [{c.line}]")
            dist += p.states
            if dist >= 20: break
    return errs


CODEPF = True
def code_prefetch(a, tag, first, last, sreg, vdst, vlane16, cond_wave_sreg=None):
    if not CODEPF: return
    a(f"s_getpc_b64 s[{sreg}:{sreg+1}]")
    a.label(f"{tag}_pcA")
    a(f"s_sub_u32 s{sreg}, s{sreg}, {tag}_pcA-{first}")
    a(f"s_subb_u32 s{sreg+1}, s{sreg+1}, 0")
    a(f"s_and_b32 s{sreg+1}, s{sreg+1}, 0xffff")
    a(f"s_mov_b32 s{sreg+2}, {last}-{first}")
    a(f"s_mov_b32 s{sreg+3}, 0x20000")
    a(f"s_lshr_b32 s{sreg+4}, s2, 3")
    a(f"s_lshl_b32 s{sreg+4}, s{sreg+4}, 10")
    a(f"buffer_load_dwordx4 v[{vdst}:{vdst+3}], v{vlane16}, s[{sreg}:{sreg+3}], s{sreg+4} offen")
```

```python
from asmlib import *
from common import *
import stamps

def srd(a, s, lo, hi, size):
    a(f"s_mov_b32 s{s}, {lo}")
    a(f"s_and_b32 s{s+1}, {hi}, 0xffff")
    a(f"s_mov_b32 s{s+2}, {size}")
    a(f"s_mov_b32 s{s+3}, 0x20000")

K1_LDS = 163840
PRE = 2
PF = True
PF2 = False
LDNT = ''
STNT = ''
OOB = "0x40000000"

def gen_k1(a):
    ACC = 128; XA = 16; WA = 32; P = 48
    XB = 64
    WB = 76
    WTR = 96
    VXE, VXO, VW = 4, 5, 6
    a.label("k1_kernel")
    a("s_cmp_ge_u32 s2, 256")
    a("s_cbranch_scc1 k1_end")
    st = stamps.St(a, 0, "s41", "s10", "s11")
    st.start()
    a("s_load_dwordx4 s[4:7], s[0:1], 0")
    a("s_load_dwordx2 s[8:9], s[0:1], 24")
    a("s_load_dwordx4 s[12:15], s[0:1], 32")
    a("s_load_dwordx2 s[10:11], s[0:1], 64")
    a("s_getpc_b64 s[42:43]")
    a("s_add_u32 s42, s42, TF@rel32@lo+4")
    a("s_addc_u32 s43, s43, TF@rel32@hi+12")
    a("s_and_b32 s40, s2, 7")
    a("s_lshr_b32 s41, s2, 3")
    a("s_lshr_b32 s16, s40, 1")
    a("s_and_b32 s17, s40, 1")
    a("s_lshl_b32 s17, s17, 3")
    a("s_and_b32 s44, s41, 7")
    a("s_or_b32 s17, s17, s44")
    a("s_lshr_b32 s18, s41, 3")
    a("v_lshrrev_b32 v7, 6, v0")
    a("v_and_b32 v1, 63, v0")
    a("v_readfirstlane_b32 s19, v7")
    a("v_and_b32 v2, 31, v1")
    a("v_lshrrev_b32 v3, 5, v1")
    a("s_nop 0")
    a("s_mov_b32 s41, s19")
    a("s_and_b32 s19, s19, 3")
    a("s_cmp_lt_u32 s41, 4")
    a("s_cbranch_scc1 k1_cons")
    a("s_cmp_eq_u32 s16, 3")
    a("s_mov_b32 s44, 896")
    a("s_cselect_b32 s44, 57344, s44")
    a("s_mov_b32 s47, 2688")
    a("s_cselect_b32 s47, 896, s47")
    a("s_mov_b32 s45, 8*896")
    a("s_cselect_b32 s45, 512*896, s45")
    a("s_lshl_b32 s48, s17, 7")
    a("s_lshl_b32 s49, s19, 5")
    a("s_add_u32 s48, s48, s49")
    a("s_lshl_b32 s49, s17, 2")
    a("s_add_u32 s49, s49, s19")
    a("s_cmp_eq_u32 s16, 3")
    a("s_cselect_b32 s48, s49, s48")
    a("s_mul_i32 s56, s48, 896")
    a("s_add_u32 s57, s56, s45")
    a("s_add_u32 s58, s57, s45")
    a("s_add_u32 s59, s58, s45")
    a("s_lshl_b32 s60, s19, 4")
    a("s_mul_i32 s60, s60, s47")
    a("s_lshl_b32 s46, s47, 2")
    a("s_add_u32 s61, s60, s46")
    a("s_add_u32 s62, s61, s46")
    a("s_add_u32 s63, s62, s46")
    a("s_lshl_b32 s46, s47, 6")
    a("s_lshl_b32 s55, s19, 12")
    a("v_lshrrev_b32 v7, 3, v1")
    a("v_and_b32 v8, 7, v1")
    a("v_lshrrev_b32 v9, 1, v7")
    a("v_xor_b32 v8, v8, v9")
    a("v_mul_lo_u32 v7, v7, s44")
    a(f"v_lshl_add_u32 v{VXE}, v8, 4, v7")
    a("v_xor_b32 v8, 4, v8")
    a(f"v_lshl_add_u32 v{VXO}, v8, 4, v7")
    a("v_lshrrev_b32 v7, 4, v1")
    a("v_and_b32 v8, 15, v1")
    a("v_lshlrev_b32 v9, 2, v7")
    a("v_xor_b32 v8, v8, v9")
    a("v_mul_lo_u32 v7, v7, s47")
    a(f"v_lshl_add_u32 v{VW}, v8, 4, v7")
    a("v_cmp_gt_u32 vcc, 14, v8")
    a(f"v_mov_b32 v9, {OOB}")
    a("s_and_b32 s64, s2, 7")
    a(f"v_cndmask_b32 v{VW}, v9, v{VW}, vcc")
    a("s_lshr_b32 s65, s2, 3")
    a("s_lshl_b32 s64, s64, 1")
    a("s_and_b32 s66, s65, 1")
    a("s_or_b32 s64, s64, s66")
    a("s_bfe_u32 s66, s65, 0x20001")
    a("s_lshr_b32 s65, s65, 3")
    a("s_lshl_b32 s67, s64, 7")
    a("s_lshl_b32 s50, s66, 3")
    a("s_add_u32 s67, s67, s50")
    a("s_mul_i32 s50, s67, 450")
    a("s_mul_i32 s65, s65, 58")
    a("s_min_u32 s65, s65, 167")
    a("s_lshl_b32 s67, s65, 1")
    a("s_add_u32 s50, s50, s67")
    a("s_add_u32 s51, s50, 14400")
    a("s_add_u32 s52, s50, 28800")
    a("s_add_u32 s53, s50, 43200")
    a("v_and_b32 v0, 255, v0")
    a("v_lshrrev_b32 v12, 3, v0")
    a("v_and_b32 v13, 7, v0")
    a("v_mul_u32_u24 v10, 450, v13")
    a("v_lshl_add_u32 v10, v12, 2, v10")
    a("v_cmp_gt_u32 vcc, 29, v12")
    a("v_lshlrev_b32 v11, 14, v12")
    a("v_lshl_add_u32 v11, v13, 4, v11")
    a("v_cndmask_b32 v10, v9, v10, vcc")
    a("v_cndmask_b32 v11, v9, v11, vcc")
    a("s_lshl_b32 s67, s65, 13")
    a("s_lshl_b32 s64, s64, 9")
    a("v_add_u32 v14, 8192, v11")
    a("s_add_u32 s64, s64, s67")
    a("s_lshl_b32 s66, s66, 7")
    a("s_add_u32 s64, s64, s66")
    a(f"s_add_u32 s64, s64, {WT}")
    a("s_waitcnt lgkmcnt(0)")
    st.stamp()
    a("s_cmp_eq_u32 s16, 3")
    a("s_cselect_b32 s48, s8, s4")
    a("s_cselect_b32 s49, s9, s5")
    srd(a, 20, "s48", "s49", S*D*2)
    a("s_mul_i32 s66, s16, 896")
    a("s_mul_i32 s67, s18, 224")
    a("s_add_u32 s66, s66, s67")
    a("s_cmp_eq_u32 s16, 3")
    a("s_cselect_b32 s66, s67, s66")
    a("s_cselect_b32 s48, s42, s6")
    a("s_cselect_b32 s49, s43, s7")
    a(f"s_mov_b32 s67, {448*2688}")
    a(f"s_cselect_b32 s67, {448*896}, s67")
    a("s_add_u32 s48, s48, s66")
    a("s_addc_u32 s49, s49, 0")
    a("s_sub_u32 s67, s67, s66")
    srd(a, 24, "s48", "s49", "s67")

    def dma_chunk(c):
        so = (c % 5) * 32768
        for u in range(4):
            a(f"s_add_u32 m0, s55, {so + u*1024}")
            a("s_nop 0" if u == 0 else f"s_add_u32 s{56+u-1}, s{56+u-1}, 128")
            a(f"buffer_load_dwordx4 v{VXE if u % 2 == 0 else VXO}, s[20:23], s{56+u} offen{LDNT} lds")
        for u in range(4):
            a(f"s_add_u32 m0, s55, {so + 16384 + u*1024}")
            a("s_add_u32 s59, s59, 128" if u == 0 else f"s_add_u32 s{60+u-1}, s{60+u-1}, s46")
            a(f"buffer_load_dwordx4 v{VW}, s[24:27], s{60+u} offen{LDNT} lds")
        a("s_add_u32 s63, s63, s46")
    issued_wt = [False]
    for c in range(PRE): dma_chunk(c)
    st.stamp()
    srd(a, 32, "s12", "s13", S*225*2)
    srd(a, 36, "s14", "s15", S*225*2)
    srd(a, 28, "s10", "s11", WS_USED)
    a("s_mov_b32 s70, 0x05040100")
    a("s_mov_b32 s71, 0x07060302")
    def wt_loads():
        so = ["s50", "s51", "s52", "s53"]
        for part in range(2):
            for b in range(4):
                a(f"buffer_load_dword v{WTR + part*4 + b}, v10, s[{32+4*part}:{35+4*part}], {so[b]} offen{LDNT}")
    def wt_out():
        for b in range(4):
            a(f"v_perm_b32 v{WTR+8+b}, v{WTR+4+b}, v{WTR+b}, s70")
            a(f"v_perm_b32 v{WTR+12+b}, v{WTR+4+b}, v{WTR+b}, s71")
        a(f"buffer_store_dwordx4 {vr(WTR+8,4)}, v11, s[28:31], s64 offen{STNT}")
        a(f"buffer_store_dwordx4 {vr(WTR+12,4)}, v14, s[28:31], s64 offen{STNT}")
    issued = PRE
    for c in range(7):
        wtl = 8 if (c > 7 - PRE - 1 + 0 and issued_wt[0]) else 0
        younger = (issued - 1 - c) * 8 + (8 if issued_wt[0] else 0)
        a(f"s_waitcnt vmcnt({younger})")
        a("s_barrier")
        if c in (0, 3): st.stamp()
        if issued < 7 and issued - 5 <= c - 2 + 0 + 0 or (issued < 5):
            dma_chunk(issued); issued += 1
        elif issued < 7:
            pass
        if issued == 7 and not issued_wt[0]:
            wt_loads(); issued_wt[0] = True
    assert issued == 7
    a("s_waitcnt vmcnt(0)")
    wt_out()
    st.finish()
    a("s_endpgm")
    a.label("k1_cons")
    st.n = 1
    import asmlib
    if asmlib.CODEPF:
        a("s_cmp_lg_u32 s19, 0")
        a("s_cbranch_scc1 k1_nocpf")
        a("v_lshlrev_b32 v4, 4, v1")
        code_prefetch(a, "k1", "k1_kernel", "k3_end", 56, 192, 4)
        a.label("k1_nocpf")
    if PF:
        a("s_load_dwordx2 s[44:45], s[0:1], 16")
        a("s_getpc_b64 s[46:47]")
        a("s_add_u32 s46, s46, TG@rel32@lo+4")
        a("s_addc_u32 s47, s47, TG@rel32@hi+12")
        a("s_getpc_b64 s[48:49]")
        a("s_add_u32 s48, s48, TB2@rel32@lo+4")
        a("s_addc_u32 s49, s49, TB2@rel32@hi+12")
        a("s_lshl_b32 s50, s2, 12")
        a("s_lshl_b32 s51, s19, 10")
        a("s_add_u32 s50, s50, s51")
        a("v_lshlrev_b32 v4, 4, v1")
    if PF2:
        a("s_lshr_b32 s56, s2, 3")
        a("s_and_b32 s57, s2, 1")
        a("s_lshl_b32 s58, s57, 10")
        a("s_lshl_b32 s59, s56, 5")
        a("s_add_u32 s58, s58, s59")
        a("s_lshl_b32 s59, s56, 6")
        a("s_lshl_b32 s60, s57, 5")
        a("s_add_u32 s59, s59, s60")
        a("s_cmp_eq_u32 s16, 3")
        a("s_cselect_b32 s58, s59, s58")
        a("s_mov_b32 s61, 2688")
        a("s_cselect_b32 s61, 896, s61")
        a("s_mul_i32 s58, s58, 896")
        a("s_mul_i32 s59, s19, 7168")
        a("s_add_u32 s58, s58, s59")
        a("s_mul_i32 s59, s56, 14")
        a("s_add_u32 s59, s59, s19")
        a("s_mul_i32 s59, s59, s61")
        a("s_mul_i32 s60, s16, 896")
        a("s_cmp_eq_u32 s16, 3")
        a("s_cselect_b32 s60, 0, s60")
        a("s_add_u32 s59, s59, s60")
        a("s_lshl_b32 s61, s61, 2")
        a(f"v_mov_b32 v5, {OOB}")
        a("v_cmp_gt_u32 vcc, 56, v1")
        a("v_lshlrev_b32 v6, 4, v1")
        a("s_nop 0")
        a("v_cndmask_b32 v5, v5, v6, vcc")
    a("s_waitcnt lgkmcnt(0)")
    st.stamp()
    if PF2:
        a("s_cmp_eq_u32 s16, 3")
        a("s_cselect_b32 s62, s8, s4")
        a("s_cselect_b32 s63, s9, s5")
        srd(a, 24, "s62", "s63", S*D*2)
        a("s_cselect_b32 s62, s42, s6")
        a("s_cselect_b32 s63, s43, s7")
        a(f"s_mov_b32 s64, {448*2688}")
        a(f"s_cselect_b32 s64, {448*896}, s64")
        srd(a, 32, "s62", "s63", "s64")
        for k in range(7):
            if k == 4: a("s_add_u32 s58, s58, 4096")
            a(f"buffer_load_dwordx4 {vr(216+4*k,4)}, v6, s[24:27], s58 offen offset:{(k%4)*1024}{LDNT}")
        for k in range(4):
            a(f"buffer_load_dwordx4 {vr(200+4*k,4)}, v5, s[32:35], s59 offen{LDNT}")
            if k < 3: a("s_add_u32 s59, s59, s61")
    if PF:
        a(f"s_mov_b32 s52, {16*28*1024}")
        a("s_cmp_lt_u32 s2, 112")
        a("s_cbranch_scc1 k1_pf")
        a("s_mov_b32 s46, s44")
        a("s_mov_b32 s47, s45")
        a(f"s_sub_u32 s50, s50, {112*4096}")
        a(f"s_mov_b32 s52, {448*896}")
        a("s_cmp_lt_u32 s2, 210")
        a("s_cbranch_scc1 k1_pf")
        a("s_mov_b32 s46, s48")
        a("s_mov_b32 s47, s49")
        a(f"s_sub_u32 s50, s50, {98*4096}")
        a("s_mov_b32 s52, 63488")
        a.label("k1_pf")
        srd(a, 20, "s46", "s47", "s52")
        a(f"buffer_load_dwordx4 {vr(196,4)}, v4, s[20:23], s50 offen")
    srd(a, 28, "s10", "s11", WS_USED)
    a("s_lshr_b32 s68, s19, 1")
    a("s_and_b32 s69, s19, 1")
    a("v_lshrrev_b32 v7, 1, v2")
    a("v_and_b32 v7, 7, v7")
    a("s_lshl_b32 s70, s68, 13")
    a("v_lshlrev_b32 v8, 7, v2")
    a("v_add_u32 v8, s70, v8")
    for k in range(4):
        a(f"v_add_u32 v9, {2*k}, v3")
        a("v_xor_b32 v9, v9, v7")
        a(f"v_lshl_add_u32 v{XB+k}, v9, 4, v8")
        a(f"v_add_u32 v{XB+4+k}, 0x10000, v{XB+k}")
        a(f"v_add_u32 v{XB+8+k}, 0x20000, v{XB+k}")
    a("v_and_b32 v7, 15, v1")
    a("v_lshrrev_b32 v7, 2, v7")
    a("v_and_b32 v8, 3, v1")
    a("v_bfe_u32 v9, v1, 4, 1")
    a("v_lshlrev_b32 v9, 5, v9")
    a("v_lshl_add_u32 v8, v8, 3, v9")
    a("s_mul_i32 s70, s69, 112")
    a("v_add_u32 v8, s70, v8")
    a("v_lshl_add_u32 v9, v3, 3, v7")
    a("v_lshlrev_b32 v9, 8, v9")
    a("v_lshlrev_b32 v7, 2, v7")
    for g in range(2):
        a(f"v_add_u32 v12, {56*g}, v8")
        a("v_lshrrev_b32 v13, 4, v12")
        a("v_xor_b32 v13, v13, v7")
        a("v_and_b32 v12, 15, v12")
        a("v_lshl_add_u32 v13, v13, 4, v12")
        a(f"v_add_u32 v{WB+g}, v13, v9")
        a(f"v_add_u32 v{WB+2+g}, 0x10000, v{WB+g}")
        a(f"v_add_u32 v{WB+4+g}, 0x20000, v{WB+g}")
    for r in range(64):
        a(f"v_mov_b32 v{ACC+r}, 0")

    def reads(t):
        c, k = t // 4, t % 4
        slot = c % 5
        st_ = slot >> 1; so = (slot & 1) * 32768
        b = t % 2
        for tbi in range(2):
            a(f"ds_read_b128 {vr(XA+8*b+4*tbi,4)}, v{XB+4*st_+k} offset:{so+tbi*4096}")
        for g in range(2):
            o = so + 16384 + k*4096
            a(f"ds_read_b64_tr_b16 {vr(WA+8*b+4*g,2)}, v{WB+2*st_+g} offset:{o}")
            a(f"ds_read_b64_tr_b16 {vr(WA+8*b+4*g+2,2)}, v{WB+2*st_+g} offset:{o+1024}")

    def chunk_wait(c):
        a("s_barrier")
        if c in (0, 1, 2, 3, 4, 6): st.stamp()

    def mainloop(order):
        chunk_wait(0)
        reads(0)
        for t in range(28):
            if t + 1 < 28:
                if (t + 1) % 4 == 0:
                    chunk_wait((t + 1) // 4)
                reads(t + 1)
                a("s_waitcnt lgkmcnt(6)")
            else:
                a("s_waitcnt lgkmcnt(0)")
            b = t % 2
            for tbi in range(2):
                for g in range(2):
                    x = vr(XA+8*b+4*tbi, 4); w = vr(WA+8*b+4*g, 4); d = vr(ACC+16*(2*tbi+g), 16)
                    if order == "WX":
                        a(f"v_mfma_f32_32x32x16_bf16 {d}, {w}, {x}, {d}")
                    else:
                        a(f"v_mfma_f32_32x32x16_bf16 {d}, {x}, {w}, {d}")
        st.stamp()

    a("s_lshl_b32 s71, s17, 2")
    a("s_lshl_b32 s72, s68, 1")
    a("s_add_u32 s71, s71, s72")
    a("s_lshl_b32 s72, s18, 2")
    a("s_lshl_b32 s73, s69, 1")
    a("s_add_u32 s72, s72, s73")
    n_save = st.n
    a("s_cmp_ge_u32 s16, 2")
    a("s_cbranch_scc1 k1_vb")
    mainloop("WX")
    a("s_mov_b32 s66, 0")
    a("s_mov_b32 s67, -1")
    a(f"s_mov_b32 s68, {f2u(CQ):#x}")
    a("s_cmp_eq_u32 s16, 0")
    a("s_cselect_b32 s68, s68, 1.0")
    a("s_mov_b32 s69, s68")
    a("s_cmp_eq_u32 s16, 1")
    a("s_cselect_b64 s[44:45], s[66:67], 0")
    a("s_lshl_b32 s70, s72, 6")
    a("s_add_u32 s70, s70, s71")
    a("s_lshl_b32 s70, s70, 11")
    a("s_lshl_b32 s73, s16, 21")
    a("s_add_u32 s70, s70, s73")
    a("v_lshlrev_b32 v4, 4, v1")
    a("v_mov_b32 v5, 1.0")
    a("s_nop 2")
    for tbi in range(2):
        for g in range(2):
            ti = 2*tbi + g
            d = ACC + 16*ti
            for r in range(0, 16, 2):
                a(f"v_pk_mul_f32 {vr(d+r,2)}, {vr(d+r,2)}, s[68:69]")
            for r in range(12, 16):
                a(f"v_cndmask_b32 v{d+r}, v{d+r}, 0, s[66:67]")
            n = 100 + 2*ti + 12
            a(f"v_pk_mul_f32 {vr(n,2)}, {vr(d,2)}, {vr(d,2)}")
            for r in range(2, 16, 2):
                a(f"v_pk_fma_f32 {vr(n,2)}, {vr(d+r,2)}, {vr(d+r,2)}, {vr(n,2)}")
            a(f"v_cndmask_b32 v{d+12}, v{d+12}, v5, s[44:45]")
            a(f"v_add_f32 v{n}, v{n}, v{n+1}")
            for q in range(8):
                a(f"v_cvt_pk_bf16_f32 v{P+8*ti+q}, v{d+2*q}, v{d+2*q+1}")
            off = g*131072 + tbi*2048
            a(f"s_add_u32 s73, s70, {off}")
            a(f"buffer_store_dwordx4 {vr(P+8*ti,4)}, v4, s[28:31], s73 offen{STNT}")
            a(f"buffer_store_dwordx4 {vr(P+8*ti+4,4)}, v4, s[28:31], s73 offen offset:1024{STNT}")
    N0 = 112
    for ti in range(4):
        a(f"v_mov_b32 v{N0+2*ti+1}, v{N0+2*ti}")
    a("s_nop 0")
    for ti in range(4):
        a(f"v_permlane32_swap_b32 v{N0+2*ti}, v{N0+2*ti+1}")
    for ti in range(4):
        a(f"v_add_f32 v{N0+2*ti}, v{N0+2*ti}, v{N0+2*ti+1}")
    for sh in (1, 2, 4, 8):
        for ti in range(4):
            a(f"v_max_f32_dpp v{N0+2*ti}, v{N0+2*ti}, v{N0+2*ti} row_shr:{sh} row_mask:0xf bank_mask:0xf")
    for ti in range(4):
        a(f"v_readlane_b32 s{56+2*ti}, v{N0+2*ti}, 15")
        a(f"v_readlane_b32 s{57+2*ti}, v{N0+2*ti}, 31")
    a("s_nop 1")
    for ti in range(4):
        a(f"s_max_u32 s{56+2*ti}, s{56+2*ti}, s{57+2*ti}")
    for ti in range(4):
        a(f"v_writelane_b32 v110, s{56+2*ti}, {ti}")
    a("s_lshl_b32 s70, s16, 4")
    a("s_add_u32 s70, s70, s72")
    a("s_lshl_b32 s70, s70, 8")
    a("s_lshl_b32 s73, s71, 2")
    a("s_add_u32 s70, s70, s73")
    a(f"s_add_u32 s70, s70, {NRM}")
    a("v_and_b32 v4, 1, v1")
    a("v_lshlrev_b32 v4, 8, v4")
    a("v_lshrrev_b32 v6, 1, v1")
    a("v_lshl_add_u32 v4, v6, 2, v4")
    a(f"v_mov_b32 v5, {OOB}")
    a("v_cmp_gt_u32 vcc, 4, v1")
    a("s_nop 1")
    a("v_cndmask_b32 v4, v5, v4, vcc")
    a("buffer_store_dword v110, v4, s[28:31], s70 offen")
    a("s_branch k1_fin")
    a.label("k1_vb")
    st.n = n_save
    mainloop("XW")
    a("s_cmp_eq_u32 s16, 3")
    a("s_cbranch_scc1 k1_b1")
    a("v_mov_b32 v5, 0x3f803f80")
    a("v_cmp_eq_u32 vcc, 28, v2")
    a("v_mov_b32 v6, 0")
    a("v_cmp_lt_u32 s[44:45], 27, v2")
    a("s_lshl_b32 s70, s72, 6")
    a("v_cndmask_b32 v6, v6, v5, vcc")
    a("s_add_u32 s70, s70, s71")
    a("s_lshl_b32 s70, s70, 11")
    a(f"s_add_u32 s70, s70, {VF}")
    a("v_lshlrev_b32 v4, 4, v1")
    a("s_nop 3")
    for tbi in range(2):
        for g in range(2):
            ti = 2*tbi + g
            d = ACC + 16*ti
            for q in range(8):
                a(f"v_cvt_pk_bf16_f32 v{P+8*ti+q}, v{d+2*q}, v{d+2*q+1}")
            for q in range(8):
                a(f"v_cndmask_b32 v{P+8*ti+q}, v{P+8*ti+q}, v6, s[44:45]")
            off = g*131072 + tbi*2048
            a(f"s_add_u32 s73, s70, {off}")
            a(f"buffer_store_dwordx4 {vr(P+8*ti,4)}, v4, s[28:31], s73 offen{STNT}")
            a(f"buffer_store_dwordx4 {vr(P+8*ti+4,4)}, v4, s[28:31], s73 offen offset:1024{STNT}")
    a("s_branch k1_fin")
    a.label("k1_b1")
    a("v_lshlrev_b32 v4, 12, v2")
    a("v_lshl_add_u32 v4, v3, 4, v4")
    a(f"v_mov_b32 v5, {OOB}")
    a("v_cmp_gt_u32 vcc, 28, v2")
    a("s_mul_i32 s70, s72, 28*4096")
    a("s_lshl_b32 s73, s71, 6")
    a("v_cndmask_b32 v4, v5, v4, vcc")
    a("s_add_u32 s70, s70, s73")
    a(f"s_add_u32 s70, s70, {ZF}")
    a("s_nop 3")
    for tbi in range(2):
        for g in range(2):
            ti = 2*tbi + g
            d = ACC + 16*ti
            for q in range(8):
                a(f"v_cvt_pk_bf16_f32 v{P+8*ti+q}, v{d+2*q}, v{d+2*q+1}")
            off = g*28*4096 + tbi*64
            a(f"s_add_u32 s73, s70, {off}")
            a(f"buffer_store_dwordx4 {vr(P+8*ti,4)}, v4, s[28:31], s73 offen{STNT}")
            a(f"buffer_store_dwordx4 {vr(P+8*ti+4,4)}, v4, s[28:31], s73 offen offset:32{STNT}")
    a.label("k1_fin")
    st.finish()
    a.label("k1_end")
    a("s_endpgm")

def desc(name, vgpr, sgpr=102):
    return f""".section .rodata,"a"
.p2align 6
.amdhsa_kernel {name}
  .amdhsa_next_free_vgpr {vgpr}
  .amdhsa_next_free_sgpr {sgpr}
  .amdhsa_accum_offset {(vgpr+3)//4*4}
  .amdhsa_group_segment_fixed_size 0
  .amdhsa_kernarg_size 72
  .amdhsa_user_sgpr_count 2
  .amdhsa_user_sgpr_kernarg_segment_ptr 1
  .amdhsa_system_sgpr_workgroup_id_x 1
  .amdhsa_float_denorm_mode_32 3
.end_amdhsa_kernel
"""
```

```python
DBGA = 0x2000000
ENABLED = False
class St:
    def __init__(self, a, kidx, wave_sreg, srd_base_lo, srd_base_hi):
        self.a = a; self.k = kidx; self.n = 0; self.w = wave_sreg; self.lo = srd_base_lo; self.hi = srd_base_hi
    def start(self):
        dbg_start(self.a, self.k)
        if not ENABLED: return
        self.a("s_memrealtime s[74:75]")
        for i in range(78, 100): self.a(f"s_mov_b32 s{i}, 0")
        self.stamp()
    def stamp(self):
        if not ENABLED: return
        assert self.n < 11
        self.a(f"s_memtime s[{78+2*self.n}:{79+2*self.n}]")
        self.n += 1
    def finish(self, vtmp=(246, 247)):
        dbg_end(self.a, self.k)
        if not ENABLED: return
        a = self.a
        a("s_waitcnt vmcnt(0)")
        self.stamp()
        a("s_memrealtime s[76:77]")
        a("s_waitcnt lgkmcnt(0)")
        a(f"s_add_u32 s64, {self.lo}, {DBGA}")
        a(f"s_addc_u32 s65, {self.hi}, 0")
        a("s_and_b32 s65, s65, 0xffff")
        a("s_mov_b32 s66, 0x1000000")
        a("s_mov_b32 s67, 0x20000")
        v0, v1 = vtmp
        a(f"s_add_u32 s70, s2, {self.k*256}")
        a("s_lshl_b32 s70, s70, 3")
        a(f"s_add_u32 s70, s70, {self.w}")
        a("s_lshl_b32 s70, s70, 7")
        a(f"v_mov_b32 v{v0}, 0")
        for i in range(self.n):
            a(f"v_writelane_b32 v{v0}, s{78+2*i}, {i}")
        a(f"v_writelane_b32 v{v0}, s74, 12")
        a(f"v_writelane_b32 v{v0}, s76, 13")
        a(f"s_getreg_b32 s71, hwreg(HW_REG_HW_ID)")
        a(f"v_writelane_b32 v{v0}, s71, 14")
        a(f"s_getreg_b32 s71, hwreg(HW_REG_XCC_ID)")
        a(f"v_writelane_b32 v{v0}, s71, 15")
        a(f"v_mbcnt_lo_u32_b32 v{v1}, -1, 0")
        a(f"v_mbcnt_hi_u32_b32 v{v1}, -1, v{v1}")
        a(f"v_lshlrev_b32 v{v1}, 2, v{v1}")
        a("s_mov_b64 exec, 0xffff")
        a(f"buffer_store_dword v{v0}, v{v1}, s[64:67], s70 offen")
        a("s_waitcnt vmcnt(0)")


DBGT = False
DBG0 = False
def dbg_start(a, k):
    if not DBGT: return
    a("s_memrealtime s[96:97]")
    a("s_load_dwordx2 s[98:99], s[0:1], 56")
def dbg_end(a, k, v0=2, v1=3):
    if not DBGT: return
    a("s_waitcnt vmcnt(0)")
    a("s_memrealtime s[94:95]")
    a("s_waitcnt lgkmcnt(0)")
    a(f"s_sub_u32 s88, s98, {512*k if DBG0 else 0}")
    a("s_subb_u32 s89, s99, 0")
    a("s_and_b32 s89, s89, 0xffff")
    a("s_mov_b32 s90, 256")
    a("s_mov_b32 s91, 0x20000")
    a("s_mov_b64 exec, 1")
    a(f"v_mov_b32 v{v1}, {16*k}")
    a(f"v_mov_b32 v{v0}, s96")
    a(f"buffer_atomic_umax v{v0}, v{v1}, s[88:91], 0 offen")
    a(f"s_not_b32 s93, s96")
    a(f"v_mov_b32 v{v0}, s93")
    a(f"buffer_atomic_umax v{v0}, v{v1}, s[88:91], 0 offen offset:4")
    a(f"v_mov_b32 v{v0}, s94")
    a(f"buffer_atomic_umax v{v0}, v{v1}, s[88:91], 0 offen offset:8")
    a(f"s_not_b32 s93, s94")
    a(f"v_mov_b32 v{v0}, s93")
    a(f"buffer_atomic_umax v{v0}, v{v1}, s[88:91], 0 offen offset:12")
    a("s_waitcnt vmcnt(0)")
```

```python
DBGA = 0x2000000
ENABLED = False
class St:
    def __init__(self, a, kidx, wave_sreg, srd_base_lo, srd_base_hi):
        self.a = a; self.k = kidx; self.n = 0; self.w = wave_sreg; self.lo = srd_base_lo; self.hi = srd_base_hi
    def start(self):
        dbg_start(self.a, self.k)
        if not ENABLED: return
        self.a("s_memrealtime s[74:75]")
        for i in range(78, 100): self.a(f"s_mov_b32 s{i}, 0")
        self.stamp()
    def stamp(self):
        if not ENABLED: return
        assert self.n < 11
        self.a(f"s_memtime s[{78+2*self.n}:{79+2*self.n}]")
        self.n += 1
    def finish(self, vtmp=(246, 247)):
        dbg_end(self.a, self.k)
        if not ENABLED: return
        a = self.a
        a("s_waitcnt vmcnt(0)")
        self.stamp()
        a("s_memrealtime s[76:77]")
        a("s_waitcnt lgkmcnt(0)")
        a(f"s_add_u32 s64, {self.lo}, {DBGA}")
        a(f"s_addc_u32 s65, {self.hi}, 0")
        a("s_and_b32 s65, s65, 0xffff")
        a("s_mov_b32 s66, 0x1000000")
        a("s_mov_b32 s67, 0x20000")
        v0, v1 = vtmp
        a(f"s_add_u32 s70, s2, {self.k*256}")
        a("s_lshl_b32 s70, s70, 3")
        a(f"s_add_u32 s70, s70, {self.w}")
        a("s_lshl_b32 s70, s70, 7")
        a(f"v_mov_b32 v{v0}, 0")
        for i in range(self.n):
            a(f"v_writelane_b32 v{v0}, s{78+2*i}, {i}")
        a(f"v_writelane_b32 v{v0}, s74, 12")
        a(f"v_writelane_b32 v{v0}, s76, 13")
        a(f"s_getreg_b32 s71, hwreg(HW_REG_HW_ID)")
        a(f"v_writelane_b32 v{v0}, s71, 14")
        a(f"s_getreg_b32 s71, hwreg(HW_REG_XCC_ID)")
        a(f"v_writelane_b32 v{v0}, s71, 15")
        a(f"v_mbcnt_lo_u32_b32 v{v1}, -1, 0")
        a(f"v_mbcnt_hi_u32_b32 v{v1}, -1, v{v1}")
        a(f"v_lshlrev_b32 v{v1}, 2, v{v1}")
        a("s_mov_b64 exec, 0xffff")
        a(f"buffer_store_dword v{v0}, v{v1}, s[64:67], s70 offen")
        a("s_waitcnt vmcnt(0)")


DBGT = False
DBG0 = False
def dbg_start(a, k):
    if not DBGT: return
    a("s_memrealtime s[96:97]")
    a("s_load_dwordx2 s[98:99], s[0:1], 56")
    a("v_readfirstlane_b32 s87, v0")
def dbg_end(a, k, v0=2, v1=3):
    if not DBGT: return
    a("s_waitcnt vmcnt(0)")
    a("s_memrealtime s[94:95]")
    a("s_waitcnt lgkmcnt(0)")
    dbg_end.n = getattr(dbg_end, "n", 0) + 1
    a("s_cmp_lg_u32 s87, 0")
    a(f"s_cbranch_scc1 dbgt_skip{dbg_end.n}")
    a(f"s_add_u32 s88, s98, {512*(2-k)}")
    a("s_addc_u32 s89, s99, 0")
    a("s_and_b32 s89, s89, 0xffff")
    a("s_mov_b32 s90, 256")
    a("s_mov_b32 s91, 0x20000")
    a("s_mov_b64 exec, 1")
    a(f"v_mov_b32 v{v1}, {16*k}")
    a(f"v_mov_b32 v{v0}, s96")
    a(f"buffer_atomic_umax v{v0}, v{v1}, s[88:91], 0 offen")
    a(f"s_not_b32 s93, s96")
    a(f"v_mov_b32 v{v0}, s93")
    a(f"buffer_atomic_umax v{v0}, v{v1}, s[88:91], 0 offen offset:4")
    a(f"v_mov_b32 v{v0}, s94")
    a(f"buffer_atomic_umax v{v0}, v{v1}, s[88:91], 0 offen offset:8")
    a(f"s_not_b32 s93, s94")
    a(f"v_mov_b32 v{v0}, s93")
    a(f"buffer_atomic_umax v{v0}, v{v1}, s[88:91], 0 offen offset:12")
    a("s_waitcnt vmcnt(0)")
    a.label(f"dbgt_skip{dbg_end.n}")
```

```python
DBGA = 0x2000000
ENABLED = False
class St:
    def __init__(self, a, kidx, wave_sreg, srd_base_lo, srd_base_hi):
        self.a = a; self.k = kidx; self.n = 0; self.w = wave_sreg; self.lo = srd_base_lo; self.hi = srd_base_hi
    def start(self):
        dbg_start(self.a, self.k)
        if not ENABLED: return
        self.a("s_memrealtime s[74:75]")
        for i in range(78, 100): self.a(f"s_mov_b32 s{i}, 0")
        self.stamp()
    def stamp(self):
        if not ENABLED: return
        assert self.n < 11
        self.a(f"s_memtime s[{78+2*self.n}:{79+2*self.n}]")
        self.n += 1
    def finish(self, vtmp=(246, 247)):
        dbg_end(self.a, self.k)
        if not ENABLED: return
        a = self.a
        a("s_waitcnt vmcnt(0)")
        self.stamp()
        a("s_memrealtime s[76:77]")
        a("s_waitcnt lgkmcnt(0)")
        if DBGK is not None:
            if DBGK == self.k: fine_end(self)
            return
        a(f"s_add_u32 s64, {self.lo}, {DBGA}")
        a(f"s_addc_u32 s65, {self.hi}, 0")
        a("s_and_b32 s65, s65, 0xffff")
        a("s_mov_b32 s66, 0x1000000")
        a("s_mov_b32 s67, 0x20000")
        v0, v1 = vtmp
        a(f"s_add_u32 s70, s2, {self.k*256}")
        a("s_lshl_b32 s70, s70, 3")
        a(f"s_add_u32 s70, s70, {self.w}")
        a("s_lshl_b32 s70, s70, 7")
        a(f"v_mov_b32 v{v0}, 0")
        for i in range(self.n):
            a(f"v_writelane_b32 v{v0}, s{78+2*i}, {i}")
        a(f"v_writelane_b32 v{v0}, s74, 12")
        a(f"v_writelane_b32 v{v0}, s76, 13")
        a(f"s_getreg_b32 s71, hwreg(HW_REG_HW_ID)")
        a(f"v_writelane_b32 v{v0}, s71, 14")
        a(f"s_getreg_b32 s71, hwreg(HW_REG_XCC_ID)")
        a(f"v_writelane_b32 v{v0}, s71, 15")
        a(f"v_mbcnt_lo_u32_b32 v{v1}, -1, 0")
        a(f"v_mbcnt_hi_u32_b32 v{v1}, -1, v{v1}")
        a(f"v_lshlrev_b32 v{v1}, 2, v{v1}")
        a("s_mov_b64 exec, 0xffff")
        a(f"buffer_store_dword v{v0}, v{v1}, s[64:67], s70 offen")
        a("s_waitcnt vmcnt(0)")


DBGT = False
DBG0 = False
def dbg_start(a, k):
    if not DBGT: return
    a("s_memrealtime s[96:97]")
    a("s_load_dwordx2 s[98:99], s[0:1], 56")
    a("v_readfirstlane_b32 s87, v0")
def dbg_end(a, k, v0=2, v1=3):
    if not DBGT: return
    a("s_waitcnt vmcnt(0)")
    a("s_memrealtime s[94:95]")
    a("s_waitcnt lgkmcnt(0)")
    dbg_end.n = getattr(dbg_end, "n", 0) + 1
    a("s_cmp_lg_u32 s87, 0")
    a(f"s_cbranch_scc1 dbgt_skip{dbg_end.n}")
    a(f"s_add_u32 s88, s98, {512*(2-k)}")
    a("s_addc_u32 s89, s99, 0")
    a("s_and_b32 s89, s89, 0xffff")
    a("s_mov_b32 s90, 256")
    a("s_mov_b32 s91, 0x20000")
    a("s_mov_b64 exec, 1")
    a(f"v_mov_b32 v{v1}, {16*k}")
    a(f"v_mov_b32 v{v0}, s96")
    a(f"buffer_atomic_umax v{v0}, v{v1}, s[88:91], 0 offen")
    a(f"s_not_b32 s93, s96")
    a(f"v_mov_b32 v{v0}, s93")
    a(f"buffer_atomic_umax v{v0}, v{v1}, s[88:91], 0 offen offset:4")
    a(f"v_mov_b32 v{v0}, s94")
    a(f"buffer_atomic_umax v{v0}, v{v1}, s[88:91], 0 offen offset:8")
    a(f"s_not_b32 s93, s94")
    a(f"v_mov_b32 v{v0}, s93")
    a(f"buffer_atomic_umax v{v0}, v{v1}, s[88:91], 0 offen offset:12")
    a("s_waitcnt vmcnt(0)")
    a.label(f"dbgt_skip{dbg_end.n}")


DBGK = None
WSEL = 0
def fine_end(st):
    a = st.a; k = st.k
    a("s_load_dwordx2 s[70:71], s[0:1], 56")
    a("s_waitcnt lgkmcnt(0)")
    fine_end.n = getattr(fine_end, "n", 0) + 1
    a(f"s_cmp_lg_u32 {st.w}, {WSEL}")
    a(f"s_cbranch_scc1 fine_skip{fine_end.n}")
    a(f"s_add_u32 s64, s70, {512*(2-k)}")
    a("s_addc_u32 s65, s71, 0")
    a("s_and_b32 s65, s65, 0xffff")
    a("s_mov_b32 s66, 256")
    a("s_mov_b32 s67, 0x20000")
    a("v_mov_b32 v246, 0")
    for i in range(11):
        a(f"s_sub_u32 s70, s{78+2*i}, s78")
        a(f"s_cmp_eq_u32 s{78+2*i}, 0")
        a("s_cselect_b32 s70, 0, s70")
        a(f"v_writelane_b32 v246, s70, {i}")
    a("s_sub_u32 s70, s76, s74")
    a("v_writelane_b32 v246, s70, 11")
    a("v_mbcnt_lo_u32_b32 v247, -1, 0")
    a("v_mbcnt_hi_u32_b32 v247, -1, v247")
    a("v_lshlrev_b32 v247, 2, v247")
    a("s_mov_b64 exec, 0xfff")
    a("buffer_atomic_umax v246, v247, s[64:67], 0 offen")
    a("s_waitcnt vmcnt(0)")
    a.label(f"fine_skip{fine_end.n}")
```

```python
from asmlib import *
from common import *
import stamps

def srd(a, s, lo, hi, size):
    a(f"s_mov_b32 s{s}, {lo}")
    a(f"s_and_b32 s{s+1}, {hi}, 0xffff")
    a(f"s_mov_b32 s{s+2}, {size}")
    a(f"s_mov_b32 s{s+3}, 0x20000")

K1_LDS = 163840
PRE = 2
PF = True
PF2 = False
PF3 = True
PFNT = ''
WTPOS = [False]
LDNT = ''
STNT = ''
OOB = "0x40000000"

def gen_k1(a):
    ACC = 128; XA = 16; WA = 32; P = 48
    XB = 64
    WB = 76
    WTR = 96
    VXE, VXO, VW = 4, 5, 6
    a.label("k1_kernel")
    a("s_cmp_ge_u32 s2, 256")
    a("s_cbranch_scc1 k1_end")
    st = stamps.St(a, 0, "s54", "s10", "s11")
    st.start()
    a("s_load_dwordx4 s[4:7], s[0:1], 0")
    a("s_load_dwordx2 s[8:9], s[0:1], 24")
    a("s_load_dwordx4 s[12:15], s[0:1], 32")
    a("s_load_dwordx2 s[10:11], s[0:1], 64")
    a("s_getpc_b64 s[42:43]")
    a("s_add_u32 s42, s42, TF@rel32@lo+4")
    a("s_addc_u32 s43, s43, TF@rel32@hi+12")
    a("s_and_b32 s40, s2, 7")
    a("s_lshr_b32 s41, s2, 3")
    a("s_lshr_b32 s16, s40, 1")
    a("s_and_b32 s17, s40, 1")
    a("s_lshl_b32 s17, s17, 3")
    a("s_and_b32 s44, s41, 7")
    a("s_or_b32 s17, s17, s44")
    a("s_lshr_b32 s18, s41, 3")
    a("v_lshrrev_b32 v7, 6, v0")
    a("v_and_b32 v1, 63, v0")
    a("v_readfirstlane_b32 s19, v7")
    a("v_and_b32 v2, 31, v1")
    a("v_lshrrev_b32 v3, 5, v1")
    a("s_nop 0")
    a("s_mov_b32 s54, s19")
    a("s_and_b32 s19, s19, 3")
    a("s_cmp_lt_u32 s54, 4")
    a("s_cbranch_scc1 k1_cons")
    a("s_cmp_eq_u32 s16, 3")
    a("s_mov_b32 s44, 896")
    a("s_cselect_b32 s44, 57344, s44")
    a("s_mov_b32 s47, 2688")
    a("s_cselect_b32 s47, 896, s47")
    a("s_mov_b32 s45, 8*896")
    a("s_cselect_b32 s45, 512*896, s45")
    a("s_lshl_b32 s48, s17, 7")
    a("s_lshl_b32 s49, s19, 5")
    a("s_add_u32 s48, s48, s49")
    a("s_lshl_b32 s49, s17, 2")
    a("s_add_u32 s49, s49, s19")
    a("s_cmp_eq_u32 s16, 3")
    a("s_cselect_b32 s48, s49, s48")
    a("s_mul_i32 s56, s48, 896")
    a("s_add_u32 s57, s56, s45")
    a("s_add_u32 s58, s57, s45")
    a("s_add_u32 s59, s58, s45")
    a("s_lshl_b32 s60, s19, 4")
    a("s_mul_i32 s60, s60, s47")
    a("s_lshl_b32 s46, s47, 2")
    a("s_add_u32 s61, s60, s46")
    a("s_add_u32 s62, s61, s46")
    a("s_add_u32 s63, s62, s46")
    a("s_lshl_b32 s46, s47, 6")
    a("s_lshl_b32 s55, s19, 12")
    a("v_lshrrev_b32 v7, 3, v1")
    a("v_and_b32 v8, 7, v1")
    a("v_lshrrev_b32 v9, 1, v7")
    a("v_xor_b32 v8, v8, v9")
    a("v_mul_lo_u32 v7, v7, s44")
    a(f"v_lshl_add_u32 v{VXE}, v8, 4, v7")
    a("v_xor_b32 v8, 4, v8")
    a(f"v_lshl_add_u32 v{VXO}, v8, 4, v7")
    a("v_lshrrev_b32 v7, 4, v1")
    a("v_and_b32 v8, 15, v1")
    a("v_lshlrev_b32 v9, 2, v7")
    a("v_xor_b32 v8, v8, v9")
    a("v_mul_lo_u32 v7, v7, s47")
    a(f"v_lshl_add_u32 v{VW}, v8, 4, v7")
    a("v_cmp_gt_u32 vcc, 14, v8")
    a(f"v_mov_b32 v9, {OOB}")
    a("s_and_b32 s64, s2, 7")
    a(f"v_cndmask_b32 v{VW}, v9, v{VW}, vcc")
    a("s_lshr_b32 s65, s2, 3")
    a("s_lshl_b32 s64, s64, 1")
    a("s_and_b32 s66, s65, 1")
    a("s_or_b32 s64, s64, s66")
    a("s_bfe_u32 s66, s65, 0x20001")
    a("s_lshr_b32 s65, s65, 3")
    a("s_lshl_b32 s67, s64, 7")
    a("s_lshl_b32 s50, s66, 3")
    a("s_add_u32 s67, s67, s50")
    a("s_mul_i32 s50, s67, 450")
    a("s_mul_i32 s65, s65, 58")
    a("s_min_u32 s65, s65, 167")
    a("s_lshl_b32 s67, s65, 1")
    a("s_add_u32 s50, s50, s67")
    a("s_add_u32 s51, s50, 14400")
    a("s_add_u32 s52, s50, 28800")
    a("s_add_u32 s53, s50, 43200")
    a("v_and_b32 v0, 255, v0")
    a("v_lshrrev_b32 v12, 3, v0")
    a("v_and_b32 v13, 7, v0")
    a("v_mul_u32_u24 v10, 450, v13")
    a("v_lshl_add_u32 v10, v12, 2, v10")
    a("v_cmp_gt_u32 vcc, 29, v12")
    a("v_lshlrev_b32 v11, 14, v12")
    a("v_lshl_add_u32 v11, v13, 4, v11")
    a("v_cndmask_b32 v10, v9, v10, vcc")
    a("v_cndmask_b32 v11, v9, v11, vcc")
    a("s_lshl_b32 s67, s65, 13")
    a("s_lshl_b32 s64, s64, 9")
    a("v_add_u32 v14, 8192, v11")
    a("s_add_u32 s64, s64, s67")
    a("s_lshl_b32 s66, s66, 7")
    a("s_add_u32 s64, s64, s66")
    a(f"s_add_u32 s64, s64, {WT}")
    a("s_waitcnt lgkmcnt(0)")
    st.stamp()
    a("s_cmp_eq_u32 s16, 3")
    a("s_cselect_b32 s48, s8, s4")
    a("s_cselect_b32 s49, s9, s5")
    srd(a, 20, "s48", "s49", S*D*2)
    a("s_mul_i32 s66, s16, 896")
    a("s_mul_i32 s67, s18, 224")
    a("s_add_u32 s66, s66, s67")
    a("s_cmp_eq_u32 s16, 3")
    a("s_cselect_b32 s66, s67, s66")
    a("s_cselect_b32 s48, s42, s6")
    a("s_cselect_b32 s49, s43, s7")
    a(f"s_mov_b32 s67, {448*2688}")
    a(f"s_cselect_b32 s67, {448*896}, s67")
    a("s_add_u32 s48, s48, s66")
    a("s_addc_u32 s49, s49, 0")
    a("s_sub_u32 s67, s67, s66")
    srd(a, 24, "s48", "s49", "s67")

    def dma_chunk(c):
        so = (c % 5) * 32768
        for u in range(4):
            a(f"s_add_u32 m0, s55, {so + u*1024}")
            a("s_nop 0" if u == 0 else f"s_add_u32 s{56+u-1}, s{56+u-1}, 128")
            a(f"buffer_load_dwordx4 v{VXE if u % 2 == 0 else VXO}, s[20:23], s{56+u} offen{LDNT} lds")
        for u in range(4):
            a(f"s_add_u32 m0, s55, {so + 16384 + u*1024}")
            a("s_add_u32 s59, s59, 128" if u == 0 else f"s_add_u32 s{60+u-1}, s{60+u-1}, s46")
            a(f"buffer_load_dwordx4 v{VW}, s[24:27], s{60+u} offen{LDNT} lds")
        a("s_add_u32 s63, s63, s46")
    issued_wt = [False]
    if PF3:
        a("s_lshr_b32 s70, s2, 3")
        a("s_and_b32 s71, s2, 1")
        a("s_lshl_b32 s72, s71, 10")
        a("s_lshl_b32 s73, s70, 5")
        a("s_add_u32 s72, s72, s73")
        a("s_lshl_b32 s73, s70, 6")
        a("s_lshl_b32 s71, s71, 5")
        a("s_add_u32 s73, s73, s71")
        a("s_cmp_eq_u32 s16, 3")
        a("s_cselect_b32 s72, s73, s72")
        a("s_mul_i32 s72, s72, 896")
        a("s_mul_i32 s73, s19, 7168")
        a("s_add_u32 s72, s72, s73")
        a("s_mul_i32 s73, s70, 14")
        a("s_add_u32 s73, s73, s19")
        a("s_mul_i32 s73, s73, s47")
        a("s_mul_i32 s71, s18, 224")
        a("s_sub_u32 s68, s48, s71")
        a("s_subb_u32 s69, s49, 0")
        a("s_add_u32 s71, s67, s71")
        srd(a, 40, "s68", "s69", "s71")
        a("s_lshl_b32 s71, s47, 2")
        a(f"v_mov_b32 v21, {OOB}")
        a("v_cmp_gt_u32 vcc, 56, v1")
        a("v_lshlrev_b32 v20, 4, v1")
        a("s_nop 0")
        a("v_cndmask_b32 v21, v21, v20, vcc")
        for k in range(7):
            if k == 4: a("s_add_u32 s72, s72, 4096")
            a(f"buffer_load_dwordx4 {vr(128+4*k,4)}, v20, s[20:23], s72 offen offset:{(k%4)*1024}{PFNT}")
        for k in range(4):
            a(f"buffer_load_dwordx4 {vr(160+4*k,4)}, v21, s[40:43], s73 offen{PFNT}")
            if k < 3: a("s_add_u32 s73, s73, s71")
        a("s_waitcnt vmcnt(0)")
        st.stamp()
    for c in range(PRE): dma_chunk(c)
    if PF3:
        WTPOS[0] = True
    st.stamp()
    srd(a, 32, "s12", "s13", S*225*2)
    srd(a, 36, "s14", "s15", S*225*2)
    srd(a, 28, "s10", "s11", WS_USED)
    a("s_mov_b32 s70, 0x05040100")
    a("s_mov_b32 s71, 0x07060302")
    def wt_loads():
        so = ["s50", "s51", "s52", "s53"]
        for part in range(2):
            for b in range(4):
                a(f"buffer_load_dword v{WTR + part*4 + b}, v10, s[{32+4*part}:{35+4*part}], {so[b]} offen{LDNT}")
    def wt_out():
        for b in range(4):
            a(f"v_perm_b32 v{WTR+8+b}, v{WTR+4+b}, v{WTR+b}, s70")
            a(f"v_perm_b32 v{WTR+12+b}, v{WTR+4+b}, v{WTR+b}, s71")
        a(f"buffer_store_dwordx4 {vr(WTR+8,4)}, v11, s[28:31], s64 offen{STNT}")
        a(f"buffer_store_dwordx4 {vr(WTR+12,4)}, v14, s[28:31], s64 offen{STNT}")
    ops = [("c", c) for c in range(PRE) for _ in range(8)]
    if PF3:
        wt_loads(); ops += [("w", 0)]*8
    issued = PRE
    for c in range(7):
        idx = max(i for i, o in enumerate(ops) if o == ("c", c))
        a(f"s_waitcnt vmcnt({len(ops)-1-idx})")
        a("s_barrier")
        if c in (0, 3): st.stamp()
        if issued < 7 and (issued < 5 or issued - 5 <= c - 2):
            dma_chunk(issued); ops += [("c", issued)]*8; issued += 1
        if issued == 7 and not PF3 and ("w", 0) not in ops:
            wt_loads(); ops += [("w", 0)]*8
    assert issued == 7
    a("s_waitcnt vmcnt(0)")
    wt_out()
    st.finish()
    a("s_endpgm")
    a.label("k1_cons")
    st.n = 1
    import asmlib
    if asmlib.CODEPF:
        a("s_cmp_lg_u32 s19, 0")
        a("s_cbranch_scc1 k1_nocpf")
        a("v_lshlrev_b32 v4, 4, v1")
        code_prefetch(a, "k1", "k1_kernel", "k3_end", 56, 192, 4)
        a.label("k1_nocpf")
    if PF:
        a("s_load_dwordx2 s[44:45], s[0:1], 16")
        a("s_getpc_b64 s[46:47]")
        a("s_add_u32 s46, s46, TG@rel32@lo+4")
        a("s_addc_u32 s47, s47, TG@rel32@hi+12")
        a("s_getpc_b64 s[48:49]")
        a("s_add_u32 s48, s48, TB2@rel32@lo+4")
        a("s_addc_u32 s49, s49, TB2@rel32@hi+12")
        a("s_lshl_b32 s50, s2, 12")
        a("s_lshl_b32 s51, s19, 10")
        a("s_add_u32 s50, s50, s51")
        a("v_lshlrev_b32 v4, 4, v1")
    if PF2:
        a("s_lshr_b32 s56, s2, 3")
        a("s_and_b32 s57, s2, 1")
        a("s_lshl_b32 s58, s57, 10")
        a("s_lshl_b32 s59, s56, 5")
        a("s_add_u32 s58, s58, s59")
        a("s_lshl_b32 s59, s56, 6")
        a("s_lshl_b32 s60, s57, 5")
        a("s_add_u32 s59, s59, s60")
        a("s_cmp_eq_u32 s16, 3")
        a("s_cselect_b32 s58, s59, s58")
        a("s_mov_b32 s61, 2688")
        a("s_cselect_b32 s61, 896, s61")
        a("s_mul_i32 s58, s58, 896")
        a("s_mul_i32 s59, s19, 7168")
        a("s_add_u32 s58, s58, s59")
        a("s_mul_i32 s59, s56, 14")
        a("s_add_u32 s59, s59, s19")
        a("s_mul_i32 s59, s59, s61")
        a("s_mul_i32 s60, s16, 896")
        a("s_cmp_eq_u32 s16, 3")
        a("s_cselect_b32 s60, 0, s60")
        a("s_add_u32 s59, s59, s60")
        a("s_lshl_b32 s61, s61, 2")
        a(f"v_mov_b32 v5, {OOB}")
        a("v_cmp_gt_u32 vcc, 56, v1")
        a("v_lshlrev_b32 v6, 4, v1")
        a("s_nop 0")
        a("v_cndmask_b32 v5, v5, v6, vcc")
    a("s_waitcnt lgkmcnt(0)")
    st.stamp()
    if PF2:
        a("s_cmp_eq_u32 s16, 3")
        a("s_cselect_b32 s62, s8, s4")
        a("s_cselect_b32 s63, s9, s5")
        srd(a, 24, "s62", "s63", S*D*2)
        a("s_cselect_b32 s62, s42, s6")
        a("s_cselect_b32 s63, s43, s7")
        a(f"s_mov_b32 s64, {448*2688}")
        a(f"s_cselect_b32 s64, {448*896}, s64")
        srd(a, 32, "s62", "s63", "s64")
        for k in range(7):
            if k == 4: a("s_add_u32 s58, s58, 4096")
            a(f"buffer_load_dwordx4 {vr(216+4*k,4)}, v6, s[24:27], s58 offen offset:{(k%4)*1024}{LDNT}")
        for k in range(4):
            a(f"buffer_load_dwordx4 {vr(200+4*k,4)}, v5, s[32:35], s59 offen{LDNT}")
            if k < 3: a("s_add_u32 s59, s59, s61")
    if PF:
        a(f"s_mov_b32 s52, {16*28*1024}")
        a("s_cmp_lt_u32 s2, 112")
        a("s_cbranch_scc1 k1_pf")
        a("s_mov_b32 s46, s44")
        a("s_mov_b32 s47, s45")
        a(f"s_sub_u32 s50, s50, {112*4096}")
        a(f"s_mov_b32 s52, {448*896}")
        a("s_cmp_lt_u32 s2, 210")
        a("s_cbranch_scc1 k1_pf")
        a("s_mov_b32 s46, s48")
        a("s_mov_b32 s47, s49")
        a(f"s_sub_u32 s50, s50, {98*4096}")
        a("s_mov_b32 s52, 63488")
        a.label("k1_pf")
        srd(a, 20, "s46", "s47", "s52")
        a(f"buffer_load_dwordx4 {vr(196,4)}, v4, s[20:23], s50 offen")
    srd(a, 28, "s10", "s11", WS_USED)
    a("s_lshr_b32 s68, s19, 1")
    a("s_and_b32 s69, s19, 1")
    a("v_lshrrev_b32 v7, 1, v2")
    a("v_and_b32 v7, 7, v7")
    a("s_lshl_b32 s70, s68, 13")
    a("v_lshlrev_b32 v8, 7, v2")
    a("v_add_u32 v8, s70, v8")
    for k in range(4):
        a(f"v_add_u32 v9, {2*k}, v3")
        a("v_xor_b32 v9, v9, v7")
        a(f"v_lshl_add_u32 v{XB+k}, v9, 4, v8")
        a(f"v_add_u32 v{XB+4+k}, 0x10000, v{XB+k}")
        a(f"v_add_u32 v{XB+8+k}, 0x20000, v{XB+k}")
    a("v_and_b32 v7, 15, v1")
    a("v_lshrrev_b32 v7, 2, v7")
    a("v_and_b32 v8, 3, v1")
    a("v_bfe_u32 v9, v1, 4, 1")
    a("v_lshlrev_b32 v9, 5, v9")
    a("v_lshl_add_u32 v8, v8, 3, v9")
    a("s_mul_i32 s70, s69, 112")
    a("v_add_u32 v8, s70, v8")
    a("v_lshl_add_u32 v9, v3, 3, v7")
    a("v_lshlrev_b32 v9, 8, v9")
    a("v_lshlrev_b32 v7, 2, v7")
    for g in range(2):
        a(f"v_add_u32 v12, {56*g}, v8")
        a("v_lshrrev_b32 v13, 4, v12")
        a("v_xor_b32 v13, v13, v7")
        a("v_and_b32 v12, 15, v12")
        a("v_lshl_add_u32 v13, v13, 4, v12")
        a(f"v_add_u32 v{WB+g}, v13, v9")
        a(f"v_add_u32 v{WB+2+g}, 0x10000, v{WB+g}")
        a(f"v_add_u32 v{WB+4+g}, 0x20000, v{WB+g}")
    for r in range(64):
        a(f"v_mov_b32 v{ACC+r}, 0")

    def reads(t):
        c, k = t // 4, t % 4
        slot = c % 5
        st_ = slot >> 1; so = (slot & 1) * 32768
        b = t % 2
        for tbi in range(2):
            a(f"ds_read_b128 {vr(XA+8*b+4*tbi,4)}, v{XB+4*st_+k} offset:{so+tbi*4096}")
        for g in range(2):
            o = so + 16384 + k*4096
            a(f"ds_read_b64_tr_b16 {vr(WA+8*b+4*g,2)}, v{WB+2*st_+g} offset:{o}")
            a(f"ds_read_b64_tr_b16 {vr(WA+8*b+4*g+2,2)}, v{WB+2*st_+g} offset:{o+1024}")

    def chunk_wait(c):
        a("s_barrier")
        if c in (0, 1, 2, 3, 4, 6): st.stamp()

    def mainloop(order):
        chunk_wait(0)
        reads(0)
        for t in range(28):
            if t + 1 < 28:
                if (t + 1) % 4 == 0:
                    chunk_wait((t + 1) // 4)
                reads(t + 1)
                a("s_waitcnt lgkmcnt(6)")
            else:
                a("s_waitcnt lgkmcnt(0)")
            b = t % 2
            for tbi in range(2):
                for g in range(2):
                    x = vr(XA+8*b+4*tbi, 4); w = vr(WA+8*b+4*g, 4); d = vr(ACC+16*(2*tbi+g), 16)
                    if order == "WX":
                        a(f"v_mfma_f32_32x32x16_bf16 {d}, {w}, {x}, {d}")
                    else:
                        a(f"v_mfma_f32_32x32x16_bf16 {d}, {x}, {w}, {d}")
        st.stamp()

    a("s_lshl_b32 s71, s17, 2")
    a("s_lshl_b32 s72, s68, 1")
    a("s_add_u32 s71, s71, s72")
    a("s_lshl_b32 s72, s18, 2")
    a("s_lshl_b32 s73, s69, 1")
    a("s_add_u32 s72, s72, s73")
    n_save = st.n
    a("s_cmp_ge_u32 s16, 2")
    a("s_cbranch_scc1 k1_vb")
    mainloop("WX")
    a("s_mov_b32 s66, 0")
    a("s_mov_b32 s67, -1")
    a(f"s_mov_b32 s68, {f2u(CQ):#x}")
    a("s_cmp_eq_u32 s16, 0")
    a("s_cselect_b32 s68, s68, 1.0")
    a("s_mov_b32 s69, s68")
    a("s_cmp_eq_u32 s16, 1")
    a("s_cselect_b64 s[44:45], s[66:67], 0")
    a("s_lshl_b32 s70, s72, 6")
    a("s_add_u32 s70, s70, s71")
    a("s_lshl_b32 s70, s70, 11")
    a("s_lshl_b32 s73, s16, 21")
    a("s_add_u32 s70, s70, s73")
    a("v_lshlrev_b32 v4, 4, v1")
    a("v_mov_b32 v5, 1.0")
    a("s_nop 2")
    for tbi in range(2):
        for g in range(2):
            ti = 2*tbi + g
            d = ACC + 16*ti
            for r in range(0, 16, 2):
                a(f"v_pk_mul_f32 {vr(d+r,2)}, {vr(d+r,2)}, s[68:69]")
            for r in range(12, 16):
                a(f"v_cndmask_b32 v{d+r}, v{d+r}, 0, s[66:67]")
            n = 100 + 2*ti + 12
            a(f"v_pk_mul_f32 {vr(n,2)}, {vr(d,2)}, {vr(d,2)}")
            for r in range(2, 16, 2):
                a(f"v_pk_fma_f32 {vr(n,2)}, {vr(d+r,2)}, {vr(d+r,2)}, {vr(n,2)}")
            a(f"v_cndmask_b32 v{d+12}, v{d+12}, v5, s[44:45]")
            a(f"v_add_f32 v{n}, v{n}, v{n+1}")
            for q in range(8):
                a(f"v_cvt_pk_bf16_f32 v{P+8*ti+q}, v{d+2*q}, v{d+2*q+1}")
            off = g*131072 + tbi*2048
            a(f"s_add_u32 s73, s70, {off}")
            a(f"buffer_store_dwordx4 {vr(P+8*ti,4)}, v4, s[28:31], s73 offen{STNT}")
            a(f"buffer_store_dwordx4 {vr(P+8*ti+4,4)}, v4, s[28:31], s73 offen offset:1024{STNT}")
    N0 = 112
    for ti in range(4):
        a(f"v_mov_b32 v{N0+2*ti+1}, v{N0+2*ti}")
    a("s_nop 0")
    for ti in range(4):
        a(f"v_permlane32_swap_b32 v{N0+2*ti}, v{N0+2*ti+1}")
    for ti in range(4):
        a(f"v_add_f32 v{N0+2*ti}, v{N0+2*ti}, v{N0+2*ti+1}")
    for sh in (1, 2, 4, 8):
        for ti in range(4):
            a(f"v_max_f32_dpp v{N0+2*ti}, v{N0+2*ti}, v{N0+2*ti} row_shr:{sh} row_mask:0xf bank_mask:0xf")
    for ti in range(4):
        a(f"v_readlane_b32 s{56+2*ti}, v{N0+2*ti}, 15")
        a(f"v_readlane_b32 s{57+2*ti}, v{N0+2*ti}, 31")
    a("s_nop 1")
    for ti in range(4):
        a(f"s_max_u32 s{56+2*ti}, s{56+2*ti}, s{57+2*ti}")
    for ti in range(4):
        a(f"v_writelane_b32 v110, s{56+2*ti}, {ti}")
    a("s_lshl_b32 s70, s16, 4")
    a("s_add_u32 s70, s70, s72")
    a("s_lshl_b32 s70, s70, 8")
    a("s_lshl_b32 s73, s71, 2")
    a("s_add_u32 s70, s70, s73")
    a(f"s_add_u32 s70, s70, {NRM}")
    a("v_and_b32 v4, 1, v1")
    a("v_lshlrev_b32 v4, 8, v4")
    a("v_lshrrev_b32 v6, 1, v1")
    a("v_lshl_add_u32 v4, v6, 2, v4")
    a(f"v_mov_b32 v5, {OOB}")
    a("v_cmp_gt_u32 vcc, 4, v1")
    a("s_nop 1")
    a("v_cndmask_b32 v4, v5, v4, vcc")
    a("buffer_store_dword v110, v4, s[28:31], s70 offen")
    a("s_branch k1_fin")
    a.label("k1_vb")
    st.n = n_save
    mainloop("XW")
    a("s_cmp_eq_u32 s16, 3")
    a("s_cbranch_scc1 k1_b1")
    a("v_mov_b32 v5, 0x3f803f80")
    a("v_cmp_eq_u32 vcc, 28, v2")
    a("v_mov_b32 v6, 0")
    a("v_cmp_lt_u32 s[44:45], 27, v2")
    a("s_lshl_b32 s70, s72, 6")
    a("v_cndmask_b32 v6, v6, v5, vcc")
    a("s_add_u32 s70, s70, s71")
    a("s_lshl_b32 s70, s70, 11")
    a(f"s_add_u32 s70, s70, {VF}")
    a("v_lshlrev_b32 v4, 4, v1")
    a("s_nop 3")
    for tbi in range(2):
        for g in range(2):
            ti = 2*tbi + g
            d = ACC + 16*ti
            for q in range(8):
                a(f"v_cvt_pk_bf16_f32 v{P+8*ti+q}, v{d+2*q}, v{d+2*q+1}")
            for q in range(8):
                a(f"v_cndmask_b32 v{P+8*ti+q}, v{P+8*ti+q}, v6, s[44:45]")
            off = g*131072 + tbi*2048
            a(f"s_add_u32 s73, s70, {off}")
            a(f"buffer_store_dwordx4 {vr(P+8*ti,4)}, v4, s[28:31], s73 offen{STNT}")
            a(f"buffer_store_dwordx4 {vr(P+8*ti+4,4)}, v4, s[28:31], s73 offen offset:1024{STNT}")
    a("s_branch k1_fin")
    a.label("k1_b1")
    a("v_lshlrev_b32 v4, 12, v2")
    a("v_lshl_add_u32 v4, v3, 4, v4")
    a(f"v_mov_b32 v5, {OOB}")
    a("v_cmp_gt_u32 vcc, 28, v2")
    a("s_mul_i32 s70, s72, 28*4096")
    a("s_lshl_b32 s73, s71, 6")
    a("v_cndmask_b32 v4, v5, v4, vcc")
    a("s_add_u32 s70, s70, s73")
    a(f"s_add_u32 s70, s70, {ZF}")
    a("s_nop 3")
    for tbi in range(2):
        for g in range(2):
            ti = 2*tbi + g
            d = ACC + 16*ti
            for q in range(8):
                a(f"v_cvt_pk_bf16_f32 v{P+8*ti+q}, v{d+2*q}, v{d+2*q+1}")
            off = g*28*4096 + tbi*64
            a(f"s_add_u32 s73, s70, {off}")
            a(f"buffer_store_dwordx4 {vr(P+8*ti,4)}, v4, s[28:31], s73 offen{STNT}")
            a(f"buffer_store_dwordx4 {vr(P+8*ti+4,4)}, v4, s[28:31], s73 offen offset:32{STNT}")
    a.label("k1_fin")
    st.finish()
    a.label("k1_end")
    a("s_endpgm")

def desc(name, vgpr, sgpr=102):
    return f""".section .rodata,"a"
.p2align 6
.amdhsa_kernel {name}
  .amdhsa_next_free_vgpr {vgpr}
  .amdhsa_next_free_sgpr {sgpr}
  .amdhsa_accum_offset {(vgpr+3)//4*4}
  .amdhsa_group_segment_fixed_size 0
  .amdhsa_kernarg_size 72
  .amdhsa_user_sgpr_count 2
  .amdhsa_user_sgpr_kernarg_segment_ptr 1
  .amdhsa_system_sgpr_workgroup_id_x 1
  .amdhsa_float_denorm_mode_32 3
.end_amdhsa_kernel
"""
```

```python
from asmlib import *
from common import *
import stamps

def srd(a, s, lo, hi, size):
    a(f"s_mov_b32 s{s}, {lo}")
    a(f"s_and_b32 s{s+1}, {hi}, 0xffff")
    a(f"s_mov_b32 s{s+2}, {size}")
    a(f"s_mov_b32 s{s+3}, 0x20000")

K1_LDS = 163840
PRE = 2
PF = True
PF2 = False
PF3 = True
PFNT = ''
XBNT = True
WTNT = ' nt'
WTPOS = [False]
LDNT = ''
STNT = ''
OOB = "0x40000000"

def gen_k1(a):
    ACC = 128; XA = 16; WA = 32; P = 48
    XB = 64
    WB = 76
    WTR = 96
    VXE, VXO, VW = 4, 5, 6
    a.label("k1_kernel")
    a("s_cmp_ge_u32 s2, 256")
    a("s_cbranch_scc1 k1_end")
    st = stamps.St(a, 0, "s54", "s10", "s11")
    st.start()
    a("s_load_dwordx4 s[4:7], s[0:1], 0")
    a("s_load_dwordx2 s[8:9], s[0:1], 24")
    a("s_load_dwordx4 s[12:15], s[0:1], 32")
    a("s_load_dwordx2 s[10:11], s[0:1], 64")
    a("s_getpc_b64 s[42:43]")
    a("s_add_u32 s42, s42, TF@rel32@lo+4")
    a("s_addc_u32 s43, s43, TF@rel32@hi+12")
    a("s_and_b32 s40, s2, 7")
    a("s_lshr_b32 s41, s2, 3")
    a("s_lshr_b32 s16, s40, 1")
    a("s_and_b32 s17, s40, 1")
    a("s_lshl_b32 s17, s17, 3")
    a("s_and_b32 s44, s41, 7")
    a("s_or_b32 s17, s17, s44")
    a("s_lshr_b32 s18, s41, 3")
    a("v_lshrrev_b32 v7, 6, v0")
    a("v_and_b32 v1, 63, v0")
    a("v_readfirstlane_b32 s19, v7")
    a("v_and_b32 v2, 31, v1")
    a("v_lshrrev_b32 v3, 5, v1")
    a("s_nop 0")
    a("s_mov_b32 s54, s19")
    a("s_and_b32 s19, s19, 3")
    a("s_cmp_lt_u32 s54, 4")
    a("s_cbranch_scc1 k1_cons")
    a("s_cmp_eq_u32 s16, 3")
    a("s_mov_b32 s44, 896")
    a("s_cselect_b32 s44, 57344, s44")
    a("s_mov_b32 s47, 2688")
    a("s_cselect_b32 s47, 896, s47")
    a("s_mov_b32 s45, 8*896")
    a("s_cselect_b32 s45, 512*896, s45")
    a("s_lshl_b32 s48, s17, 7")
    a("s_lshl_b32 s49, s19, 5")
    a("s_add_u32 s48, s48, s49")
    a("s_lshl_b32 s49, s17, 2")
    a("s_add_u32 s49, s49, s19")
    a("s_cmp_eq_u32 s16, 3")
    a("s_cselect_b32 s48, s49, s48")
    a("s_mul_i32 s56, s48, 896")
    a("s_add_u32 s57, s56, s45")
    a("s_add_u32 s58, s57, s45")
    a("s_add_u32 s59, s58, s45")
    a("s_lshl_b32 s60, s19, 4")
    a("s_mul_i32 s60, s60, s47")
    a("s_lshl_b32 s46, s47, 2")
    a("s_add_u32 s61, s60, s46")
    a("s_add_u32 s62, s61, s46")
    a("s_add_u32 s63, s62, s46")
    a("s_lshl_b32 s46, s47, 6")
    a("s_lshl_b32 s55, s19, 12")
    a("v_lshrrev_b32 v7, 3, v1")
    a("v_and_b32 v8, 7, v1")
    a("v_lshrrev_b32 v9, 1, v7")
    a("v_xor_b32 v8, v8, v9")
    a("v_mul_lo_u32 v7, v7, s44")
    a(f"v_lshl_add_u32 v{VXE}, v8, 4, v7")
    a("v_xor_b32 v8, 4, v8")
    a(f"v_lshl_add_u32 v{VXO}, v8, 4, v7")
    a("v_lshrrev_b32 v7, 4, v1")
    a("v_and_b32 v8, 15, v1")
    a("v_lshlrev_b32 v9, 2, v7")
    a("v_xor_b32 v8, v8, v9")
    a("v_mul_lo_u32 v7, v7, s47")
    a(f"v_lshl_add_u32 v{VW}, v8, 4, v7")
    a("v_cmp_gt_u32 vcc, 14, v8")
    a(f"v_mov_b32 v9, {OOB}")
    a("s_and_b32 s64, s2, 7")
    a(f"v_cndmask_b32 v{VW}, v9, v{VW}, vcc")
    a("s_lshr_b32 s65, s2, 3")
    a("s_lshl_b32 s64, s64, 1")
    a("s_and_b32 s66, s65, 1")
    a("s_or_b32 s64, s64, s66")
    a("s_bfe_u32 s66, s65, 0x20001")
    a("s_lshr_b32 s65, s65, 3")
    a("s_lshl_b32 s67, s64, 7")
    a("s_lshl_b32 s50, s66, 3")
    a("s_add_u32 s67, s67, s50")
    a("s_mul_i32 s50, s67, 450")
    a("s_mul_i32 s65, s65, 58")
    a("s_min_u32 s65, s65, 167")
    a("s_lshl_b32 s67, s65, 1")
    a("s_add_u32 s50, s50, s67")
    a("s_add_u32 s51, s50, 14400")
    a("s_add_u32 s52, s50, 28800")
    a("s_add_u32 s53, s50, 43200")
    a("v_and_b32 v0, 255, v0")
    a("v_lshrrev_b32 v12, 3, v0")
    a("v_and_b32 v13, 7, v0")
    a("v_mul_u32_u24 v10, 450, v13")
    a("v_lshl_add_u32 v10, v12, 2, v10")
    a("v_cmp_gt_u32 vcc, 29, v12")
    a("v_lshlrev_b32 v11, 14, v12")
    a("v_lshl_add_u32 v11, v13, 4, v11")
    a("v_cndmask_b32 v10, v9, v10, vcc")
    a("v_cndmask_b32 v11, v9, v11, vcc")
    a("s_lshl_b32 s67, s65, 13")
    a("s_lshl_b32 s64, s64, 9")
    a("v_add_u32 v14, 8192, v11")
    a("s_add_u32 s64, s64, s67")
    a("s_lshl_b32 s66, s66, 7")
    a("s_add_u32 s64, s64, s66")
    a(f"s_add_u32 s64, s64, {WT}")
    a("s_waitcnt lgkmcnt(0)")
    st.stamp()
    a("s_cmp_eq_u32 s16, 3")
    a("s_cselect_b32 s48, s8, s4")
    a("s_cselect_b32 s49, s9, s5")
    srd(a, 20, "s48", "s49", S*D*2)
    a("s_mul_i32 s66, s16, 896")
    a("s_mul_i32 s67, s18, 224")
    a("s_add_u32 s66, s66, s67")
    a("s_cmp_eq_u32 s16, 3")
    a("s_cselect_b32 s66, s67, s66")
    a("s_cselect_b32 s48, s42, s6")
    a("s_cselect_b32 s49, s43, s7")
    a(f"s_mov_b32 s67, {448*2688}")
    a(f"s_cselect_b32 s67, {448*896}, s67")
    a("s_add_u32 s48, s48, s66")
    a("s_addc_u32 s49, s49, 0")
    a("s_sub_u32 s67, s67, s66")
    srd(a, 24, "s48", "s49", "s67")

    def dma_chunk(c):
        so = (c % 5) * 32768
        for u in range(4):
            a(f"s_add_u32 m0, s55, {so + u*1024}")
            a("s_nop 0" if u == 0 else f"s_add_u32 s{56+u-1}, s{56+u-1}, 128")
            a(f"buffer_load_dwordx4 v{VXE if u % 2 == 0 else VXO}, s[20:23], s{56+u} offen{LDNT} lds")
        for u in range(4):
            a(f"s_add_u32 m0, s55, {so + 16384 + u*1024}")
            a("s_add_u32 s59, s59, 128" if u == 0 else f"s_add_u32 s{60+u-1}, s{60+u-1}, s46")
            a(f"buffer_load_dwordx4 v{VW}, s[24:27], s{60+u} offen{LDNT} lds")
        a("s_add_u32 s63, s63, s46")
    issued_wt = [False]
    if PF3:
        a("s_lshr_b32 s70, s2, 3")
        a("s_and_b32 s71, s2, 1")
        a("s_lshl_b32 s72, s71, 10")
        a("s_lshl_b32 s73, s70, 5")
        a("s_add_u32 s72, s72, s73")
        a("s_lshl_b32 s73, s70, 6")
        a("s_lshl_b32 s71, s71, 5")
        a("s_add_u32 s73, s73, s71")
        a("s_cmp_eq_u32 s16, 3")
        a("s_cselect_b32 s72, s73, s72")
        a("s_mul_i32 s72, s72, 896")
        a("s_mul_i32 s73, s19, 7168")
        a("s_add_u32 s72, s72, s73")
        a("s_mul_i32 s73, s70, 14")
        a("s_add_u32 s73, s73, s19")
        a("s_mul_i32 s73, s73, s47")
        a("s_mul_i32 s71, s18, 224")
        a("s_sub_u32 s68, s48, s71")
        a("s_subb_u32 s69, s49, 0")
        a("s_add_u32 s71, s67, s71")
        srd(a, 40, "s68", "s69", "s71")
        a("s_lshl_b32 s71, s47, 2")
        a(f"v_mov_b32 v21, {OOB}")
        a("v_cmp_gt_u32 vcc, 56, v1")
        a("v_lshlrev_b32 v20, 4, v1")
        a("s_nop 0")
        a("v_cndmask_b32 v21, v21, v20, vcc")
        if XBNT:
            a("s_cmp_eq_u32 s16, 3")
            a("s_cbranch_scc1 k1_pfb")
        for k in range(7):
            if k == 4: a("s_add_u32 s72, s72, 4096")
            a(f"buffer_load_dwordx4 {vr(128+4*k,4)}, v20, s[20:23], s72 offen offset:{(k%4)*1024}{PFNT}")
        if XBNT:
            a("s_branch k1_pfw")
            a.label("k1_pfb")
            for k in range(7):
                if k == 4: a("s_add_u32 s72, s72, 4096")
                a(f"buffer_load_dwordx4 {vr(128+4*k,4)}, v20, s[20:23], s72 offen offset:{(k%4)*1024} nt")
            a.label("k1_pfw")
        for k in range(4):
            a(f"buffer_load_dwordx4 {vr(160+4*k,4)}, v21, s[40:43], s73 offen{PFNT}")
            if k < 3: a("s_add_u32 s73, s73, s71")
        a("s_waitcnt vmcnt(0)")
        st.stamp()
    for c in range(PRE): dma_chunk(c)
    if PF3:
        WTPOS[0] = True
    st.stamp()
    srd(a, 32, "s12", "s13", S*225*2)
    srd(a, 36, "s14", "s15", S*225*2)
    srd(a, 28, "s10", "s11", WS_USED)
    a("s_mov_b32 s70, 0x05040100")
    a("s_mov_b32 s71, 0x07060302")
    def wt_loads():
        so = ["s50", "s51", "s52", "s53"]
        for part in range(2):
            for b in range(4):
                a(f"buffer_load_dword v{WTR + part*4 + b}, v10, s[{32+4*part}:{35+4*part}], {so[b]} offen{WTNT}")
    def wt_out():
        for b in range(4):
            a(f"v_perm_b32 v{WTR+8+b}, v{WTR+4+b}, v{WTR+b}, s70")
            a(f"v_perm_b32 v{WTR+12+b}, v{WTR+4+b}, v{WTR+b}, s71")
        a(f"buffer_store_dwordx4 {vr(WTR+8,4)}, v11, s[28:31], s64 offen{STNT}")
        a(f"buffer_store_dwordx4 {vr(WTR+12,4)}, v14, s[28:31], s64 offen{STNT}")
    ops = [("c", c) for c in range(PRE) for _ in range(8)]
    if PF3:
        wt_loads(); ops += [("w", 0)]*8
    issued = PRE
    for c in range(7):
        idx = max(i for i, o in enumerate(ops) if o == ("c", c))
        a(f"s_waitcnt vmcnt({len(ops)-1-idx})")
        a("s_barrier")
        if c in (0, 3): st.stamp()
        if issued < 7 and (issued < 5 or issued - 5 <= c - 2):
            dma_chunk(issued); ops += [("c", issued)]*8; issued += 1
        if issued == 7 and not PF3 and ("w", 0) not in ops:
            wt_loads(); ops += [("w", 0)]*8
    assert issued == 7
    a("s_waitcnt vmcnt(0)")
    wt_out()
    st.finish()
    a("s_endpgm")
    a.label("k1_cons")
    st.n = 1
    import asmlib
    if asmlib.CODEPF:
        a("s_cmp_lg_u32 s19, 0")
        a("s_cbranch_scc1 k1_nocpf")
        a("v_lshlrev_b32 v4, 4, v1")
        code_prefetch(a, "k1", "k1_kernel", "k3_end", 56, 192, 4)
        a.label("k1_nocpf")
    if PF:
        a("s_load_dwordx2 s[44:45], s[0:1], 16")
        a("s_getpc_b64 s[46:47]")
        a("s_add_u32 s46, s46, TG@rel32@lo+4")
        a("s_addc_u32 s47, s47, TG@rel32@hi+12")
        a("s_getpc_b64 s[48:49]")
        a("s_add_u32 s48, s48, TB2@rel32@lo+4")
        a("s_addc_u32 s49, s49, TB2@rel32@hi+12")
        a("s_lshl_b32 s50, s2, 12")
        a("s_lshl_b32 s51, s19, 10")
        a("s_add_u32 s50, s50, s51")
        a("v_lshlrev_b32 v4, 4, v1")
    if PF2:
        a("s_lshr_b32 s56, s2, 3")
        a("s_and_b32 s57, s2, 1")
        a("s_lshl_b32 s58, s57, 10")
        a("s_lshl_b32 s59, s56, 5")
        a("s_add_u32 s58, s58, s59")
        a("s_lshl_b32 s59, s56, 6")
        a("s_lshl_b32 s60, s57, 5")
        a("s_add_u32 s59, s59, s60")
        a("s_cmp_eq_u32 s16, 3")
        a("s_cselect_b32 s58, s59, s58")
        a("s_mov_b32 s61, 2688")
        a("s_cselect_b32 s61, 896, s61")
        a("s_mul_i32 s58, s58, 896")
        a("s_mul_i32 s59, s19, 7168")
        a("s_add_u32 s58, s58, s59")
        a("s_mul_i32 s59, s56, 14")
        a("s_add_u32 s59, s59, s19")
        a("s_mul_i32 s59, s59, s61")
        a("s_mul_i32 s60, s16, 896")
        a("s_cmp_eq_u32 s16, 3")
        a("s_cselect_b32 s60, 0, s60")
        a("s_add_u32 s59, s59, s60")
        a("s_lshl_b32 s61, s61, 2")
        a(f"v_mov_b32 v5, {OOB}")
        a("v_cmp_gt_u32 vcc, 56, v1")
        a("v_lshlrev_b32 v6, 4, v1")
        a("s_nop 0")
        a("v_cndmask_b32 v5, v5, v6, vcc")
    a("s_waitcnt lgkmcnt(0)")
    st.stamp()
    if PF2:
        a("s_cmp_eq_u32 s16, 3")
        a("s_cselect_b32 s62, s8, s4")
        a("s_cselect_b32 s63, s9, s5")
        srd(a, 24, "s62", "s63", S*D*2)
        a("s_cselect_b32 s62, s42, s6")
        a("s_cselect_b32 s63, s43, s7")
        a(f"s_mov_b32 s64, {448*2688}")
        a(f"s_cselect_b32 s64, {448*896}, s64")
        srd(a, 32, "s62", "s63", "s64")
        for k in range(7):
            if k == 4: a("s_add_u32 s58, s58, 4096")
            a(f"buffer_load_dwordx4 {vr(216+4*k,4)}, v6, s[24:27], s58 offen offset:{(k%4)*1024}{LDNT}")
        for k in range(4):
            a(f"buffer_load_dwordx4 {vr(200+4*k,4)}, v5, s[32:35], s59 offen{LDNT}")
            if k < 3: a("s_add_u32 s59, s59, s61")
    if PF:
        a(f"s_mov_b32 s52, {16*28*1024}")
        a("s_cmp_lt_u32 s2, 112")
        a("s_cbranch_scc1 k1_pf")
        a("s_mov_b32 s46, s44")
        a("s_mov_b32 s47, s45")
        a(f"s_sub_u32 s50, s50, {112*4096}")
        a(f"s_mov_b32 s52, {448*896}")
        a("s_cmp_lt_u32 s2, 210")
        a("s_cbranch_scc1 k1_pf")
        a("s_mov_b32 s46, s48")
        a("s_mov_b32 s47, s49")
        a(f"s_sub_u32 s50, s50, {98*4096}")
        a("s_mov_b32 s52, 63488")
        a.label("k1_pf")
        srd(a, 20, "s46", "s47", "s52")
        a(f"buffer_load_dwordx4 {vr(196,4)}, v4, s[20:23], s50 offen")
    srd(a, 28, "s10", "s11", WS_USED)
    a("s_lshr_b32 s68, s19, 1")
    a("s_and_b32 s69, s19, 1")
    a("v_lshrrev_b32 v7, 1, v2")
    a("v_and_b32 v7, 7, v7")
    a("s_lshl_b32 s70, s68, 13")
    a("v_lshlrev_b32 v8, 7, v2")
    a("v_add_u32 v8, s70, v8")
    for k in range(4):
        a(f"v_add_u32 v9, {2*k}, v3")
        a("v_xor_b32 v9, v9, v7")
        a(f"v_lshl_add_u32 v{XB+k}, v9, 4, v8")
        a(f"v_add_u32 v{XB+4+k}, 0x10000, v{XB+k}")
        a(f"v_add_u32 v{XB+8+k}, 0x20000, v{XB+k}")
    a("v_and_b32 v7, 15, v1")
    a("v_lshrrev_b32 v7, 2, v7")
    a("v_and_b32 v8, 3, v1")
    a("v_bfe_u32 v9, v1, 4, 1")
    a("v_lshlrev_b32 v9, 5, v9")
    a("v_lshl_add_u32 v8, v8, 3, v9")
    a("s_mul_i32 s70, s69, 112")
    a("v_add_u32 v8, s70, v8")
    a("v_lshl_add_u32 v9, v3, 3, v7")
    a("v_lshlrev_b32 v9, 8, v9")
    a("v_lshlrev_b32 v7, 2, v7")
    for g in range(2):
        a(f"v_add_u32 v12, {56*g}, v8")
        a("v_lshrrev_b32 v13, 4, v12")
        a("v_xor_b32 v13, v13, v7")
        a("v_and_b32 v12, 15, v12")
        a("v_lshl_add_u32 v13, v13, 4, v12")
        a(f"v_add_u32 v{WB+g}, v13, v9")
        a(f"v_add_u32 v{WB+2+g}, 0x10000, v{WB+g}")
        a(f"v_add_u32 v{WB+4+g}, 0x20000, v{WB+g}")
    for r in range(64):
        a(f"v_mov_b32 v{ACC+r}, 0")

    def reads(t):
        c, k = t // 4, t % 4
        slot = c % 5
        st_ = slot >> 1; so = (slot & 1) * 32768
        b = t % 2
        for tbi in range(2):
            a(f"ds_read_b128 {vr(XA+8*b+4*tbi,4)}, v{XB+4*st_+k} offset:{so+tbi*4096}")
        for g in range(2):
            o = so + 16384 + k*4096
            a(f"ds_read_b64_tr_b16 {vr(WA+8*b+4*g,2)}, v{WB+2*st_+g} offset:{o}")
            a(f"ds_read_b64_tr_b16 {vr(WA+8*b+4*g+2,2)}, v{WB+2*st_+g} offset:{o+1024}")

    def chunk_wait(c):
        a("s_barrier")
        if c in (0, 1, 2, 3, 4, 6): st.stamp()

    def mainloop(order):
        chunk_wait(0)
        reads(0)
        for t in range(28):
            if t + 1 < 28:
                if (t + 1) % 4 == 0:
                    chunk_wait((t + 1) // 4)
                reads(t + 1)
                a("s_waitcnt lgkmcnt(6)")
            else:
                a("s_waitcnt lgkmcnt(0)")
            b = t % 2
            for tbi in range(2):
                for g in range(2):
                    x = vr(XA+8*b+4*tbi, 4); w = vr(WA+8*b+4*g, 4); d = vr(ACC+16*(2*tbi+g), 16)
                    if order == "WX":
                        a(f"v_mfma_f32_32x32x16_bf16 {d}, {w}, {x}, {d}")
                    else:
                        a(f"v_mfma_f32_32x32x16_bf16 {d}, {x}, {w}, {d}")
        st.stamp()

    a("s_lshl_b32 s71, s17, 2")
    a("s_lshl_b32 s72, s68, 1")
    a("s_add_u32 s71, s71, s72")
    a("s_lshl_b32 s72, s18, 2")
    a("s_lshl_b32 s73, s69, 1")
    a("s_add_u32 s72, s72, s73")
    n_save = st.n
    a("s_cmp_ge_u32 s16, 2")
    a("s_cbranch_scc1 k1_vb")
    mainloop("WX")
    a("s_mov_b32 s66, 0")
    a("s_mov_b32 s67, -1")
    a(f"s_mov_b32 s68, {f2u(CQ):#x}")
    a("s_cmp_eq_u32 s16, 0")
    a("s_cselect_b32 s68, s68, 1.0")
    a("s_mov_b32 s69, s68")
    a("s_cmp_eq_u32 s16, 1")
    a("s_cselect_b64 s[44:45], s[66:67], 0")
    a("s_lshl_b32 s70, s72, 6")
    a("s_add_u32 s70, s70, s71")
    a("s_lshl_b32 s70, s70, 11")
    a("s_lshl_b32 s73, s16, 21")
    a("s_add_u32 s70, s70, s73")
    a("v_lshlrev_b32 v4, 4, v1")
    a("v_mov_b32 v5, 1.0")
    a("s_nop 2")
    for tbi in range(2):
        for g in range(2):
            ti = 2*tbi + g
            d = ACC + 16*ti
            for r in range(0, 16, 2):
                a(f"v_pk_mul_f32 {vr(d+r,2)}, {vr(d+r,2)}, s[68:69]")
            for r in range(12, 16):
                a(f"v_cndmask_b32 v{d+r}, v{d+r}, 0, s[66:67]")
            n = 100 + 2*ti + 12
            a(f"v_pk_mul_f32 {vr(n,2)}, {vr(d,2)}, {vr(d,2)}")
            for r in range(2, 16, 2):
                a(f"v_pk_fma_f32 {vr(n,2)}, {vr(d+r,2)}, {vr(d+r,2)}, {vr(n,2)}")
            a(f"v_cndmask_b32 v{d+12}, v{d+12}, v5, s[44:45]")
            a(f"v_add_f32 v{n}, v{n}, v{n+1}")
            for q in range(8):
                a(f"v_cvt_pk_bf16_f32 v{P+8*ti+q}, v{d+2*q}, v{d+2*q+1}")
            off = g*131072 + tbi*2048
            a(f"s_add_u32 s73, s70, {off}")
            a(f"buffer_store_dwordx4 {vr(P+8*ti,4)}, v4, s[28:31], s73 offen{STNT}")
            a(f"buffer_store_dwordx4 {vr(P+8*ti+4,4)}, v4, s[28:31], s73 offen offset:1024{STNT}")
    N0 = 112
    for ti in range(4):
        a(f"v_mov_b32 v{N0+2*ti+1}, v{N0+2*ti}")
    a("s_nop 0")
    for ti in range(4):
        a(f"v_permlane32_swap_b32 v{N0+2*ti}, v{N0+2*ti+1}")
    for ti in range(4):
        a(f"v_add_f32 v{N0+2*ti}, v{N0+2*ti}, v{N0+2*ti+1}")
    for sh in (1, 2, 4, 8):
        for ti in range(4):
            a(f"v_max_f32_dpp v{N0+2*ti}, v{N0+2*ti}, v{N0+2*ti} row_shr:{sh} row_mask:0xf bank_mask:0xf")
    for ti in range(4):
        a(f"v_readlane_b32 s{56+2*ti}, v{N0+2*ti}, 15")
        a(f"v_readlane_b32 s{57+2*ti}, v{N0+2*ti}, 31")
    a("s_nop 1")
    for ti in range(4):
        a(f"s_max_u32 s{56+2*ti}, s{56+2*ti}, s{57+2*ti}")
    for ti in range(4):
        a(f"v_writelane_b32 v110, s{56+2*ti}, {ti}")
    a("s_lshl_b32 s70, s16, 4")
    a("s_add_u32 s70, s70, s72")
    a("s_lshl_b32 s70, s70, 8")
    a("s_lshl_b32 s73, s71, 2")
    a("s_add_u32 s70, s70, s73")
    a(f"s_add_u32 s70, s70, {NRM}")
    a("v_and_b32 v4, 1, v1")
    a("v_lshlrev_b32 v4, 8, v4")
    a("v_lshrrev_b32 v6, 1, v1")
    a("v_lshl_add_u32 v4, v6, 2, v4")
    a(f"v_mov_b32 v5, {OOB}")
    a("v_cmp_gt_u32 vcc, 4, v1")
    a("s_nop 1")
    a("v_cndmask_b32 v4, v5, v4, vcc")
    a("buffer_store_dword v110, v4, s[28:31], s70 offen")
    a("s_branch k1_fin")
    a.label("k1_vb")
    st.n = n_save
    mainloop("XW")
    a("s_cmp_eq_u32 s16, 3")
    a("s_cbranch_scc1 k1_b1")
    a("v_mov_b32 v5, 0x3f803f80")
    a("v_cmp_eq_u32 vcc, 28, v2")
    a("v_mov_b32 v6, 0")
    a("v_cmp_lt_u32 s[44:45], 27, v2")
    a("s_lshl_b32 s70, s72, 6")
    a("v_cndmask_b32 v6, v6, v5, vcc")
    a("s_add_u32 s70, s70, s71")
    a("s_lshl_b32 s70, s70, 11")
    a(f"s_add_u32 s70, s70, {VF}")
    a("v_lshlrev_b32 v4, 4, v1")
    a("s_nop 3")
    for tbi in range(2):
        for g in range(2):
            ti = 2*tbi + g
            d = ACC + 16*ti
            for q in range(8):
                a(f"v_cvt_pk_bf16_f32 v{P+8*ti+q}, v{d+2*q}, v{d+2*q+1}")
            for q in range(8):
                a(f"v_cndmask_b32 v{P+8*ti+q}, v{P+8*ti+q}, v6, s[44:45]")
            off = g*131072 + tbi*2048
            a(f"s_add_u32 s73, s70, {off}")
            a(f"buffer_store_dwordx4 {vr(P+8*ti,4)}, v4, s[28:31], s73 offen{STNT}")
            a(f"buffer_store_dwordx4 {vr(P+8*ti+4,4)}, v4, s[28:31], s73 offen offset:1024{STNT}")
    a("s_branch k1_fin")
    a.label("k1_b1")
    a("v_lshlrev_b32 v4, 12, v2")
    a("v_lshl_add_u32 v4, v3, 4, v4")
    a(f"v_mov_b32 v5, {OOB}")
    a("v_cmp_gt_u32 vcc, 28, v2")
    a("s_mul_i32 s70, s72, 28*4096")
    a("s_lshl_b32 s73, s71, 6")
    a("v_cndmask_b32 v4, v5, v4, vcc")
    a("s_add_u32 s70, s70, s73")
    a(f"s_add_u32 s70, s70, {ZF}")
    a("s_nop 3")
    for tbi in range(2):
        for g in range(2):
            ti = 2*tbi + g
            d = ACC + 16*ti
            for q in range(8):
                a(f"v_cvt_pk_bf16_f32 v{P+8*ti+q}, v{d+2*q}, v{d+2*q+1}")
            off = g*28*4096 + tbi*64
            a(f"s_add_u32 s73, s70, {off}")
            a(f"buffer_store_dwordx4 {vr(P+8*ti,4)}, v4, s[28:31], s73 offen{STNT}")
            a(f"buffer_store_dwordx4 {vr(P+8*ti+4,4)}, v4, s[28:31], s73 offen offset:32{STNT}")
    a.label("k1_fin")
    st.finish()
    a.label("k1_end")
    a("s_endpgm")

def desc(name, vgpr, sgpr=102):
    return f""".section .rodata,"a"
.p2align 6
.amdhsa_kernel {name}
  .amdhsa_next_free_vgpr {vgpr}
  .amdhsa_next_free_sgpr {sgpr}
  .amdhsa_accum_offset {(vgpr+3)//4*4}
  .amdhsa_group_segment_fixed_size 0
  .amdhsa_kernarg_size 72
  .amdhsa_user_sgpr_count 2
  .amdhsa_user_sgpr_kernarg_segment_ptr 1
  .amdhsa_system_sgpr_workgroup_id_x 1
  .amdhsa_float_denorm_mode_32 3
.end_amdhsa_kernel
"""
```
